```python
import torch

def _softmax(x, axis=-1):
    return torch.softmax(x, dim=axis)
def _gelu(x):
    return torch.nn.functional.gelu(x, approximate="tanh")
def _silu(x):
    return torch.nn.functional.silu(x)
def _sigmoid(x):
    return torch.sigmoid(x)
def _layernorm(x, axis=-1, eps=1e-5):
    m = x.mean(dim=axis, keepdim=True)
    v = x.var(dim=axis, keepdim=True, unbiased=False)
    return (x - m) / torch.sqrt(v + eps)
def _scatter_add(tgt, idx, src, axis=0):
    return tgt.clone().index_add_(axis, idx, src)
def _segment_sum(src, seg, n):
    out = torch.zeros((n,) + src.shape[1:], dtype=src.dtype)
    return out.index_add_(0, seg, src)
def _pad(x, pw):
    flat = tuple(v for pair in reversed(pw) for v in pair)
    return torch.nn.functional.pad(x, flat)

kernel_name = 'interleave_layers__softmax_full_mha__glu_gated_glu__prompt'

def setup_inputs():

    _w = (lambda a: (lambda t: t.to(torch.bfloat16) if t.is_floating_point() else t)(torch.as_tensor(a)))
    def _A_setup():
        B, S, D = 1, 2048, 512
        return {
            "x": _w((lambda *s: torch.randn(*s, dtype=torch.bfloat16) * 0.05)(B, S, D)),
            "wqkv": _w((lambda *s: torch.randn(*s, dtype=torch.bfloat16) * 0.05)(D, 3 * D)),
            "wo": _w((lambda *s: torch.randn(*s, dtype=torch.bfloat16) * 0.05)(D, D)),
        }
    _A_in = _A_setup()

    def _B_setup():
        B, S, D, F = 1, 2048, 512, 1792
        return {
            "x": _w((lambda *s: torch.randn(*s, dtype=torch.bfloat16) * 0.05)(B, S, D)),
            "w_gate": _w((lambda *s: torch.randn(*s, dtype=torch.bfloat16) * 0.05)(D, F)),
            "w_up": _w((lambda *s: torch.randn(*s, dtype=torch.bfloat16) * 0.05)(D, F)),
            "w_down": _w((lambda *s: torch.randn(*s, dtype=torch.bfloat16) * 0.05)(F, D)),
        }
    _B_in = _B_setup()

    return {
        "A_x": _A_in["x"],
        "A_wqkv": _A_in["wqkv"],
        "A_wo": _A_in["wo"],
        "B_x": _B_in["x"],
        "B_w_gate": _B_in["w_gate"],
        "B_w_up": _B_in["w_up"],
        "B_w_down": _B_in["w_down"],
    }

def reference(A_x, A_wqkv, A_wo, B_x, B_w_gate, B_w_up, B_w_down):
    def _A_ref(x, wqkv, wo):
        B, S, D = x.shape
        H = 32; Dh = D // H
        qkv = (lambda x, *d: x.permute(*d))((x @ wqkv).reshape(B, S, 3, H, Dh), 2, 0, 3, 1, 4)
        q, k, v = qkv[0], qkv[1], qkv[2]
        scale = Dh ** -0.5
        scores = torch.einsum("bhqd,bhkd->bhqk", q, k) * scale
        p = _softmax(scores, axis=-1)
        o = torch.einsum("bhqk,bhkd->bhqd", p, v)
        return (lambda x, *d: x.permute(*d))(o, 0, 2, 1, 3).reshape(B, S, D) @ wo

    def _B_ref(x, w_gate, w_up, w_down):
        g = torch.einsum("bsd,df->bsf", x, w_gate)
        u = torch.einsum("bsd,df->bsf", x, w_up)
        h = _sigmoid(g) * u
        return torch.einsum("bsf,fd->bsd", h, w_down)

    x = A_x
    x = x + _A_ref(_layernorm(x, axis=-1), A_wqkv, A_wo)
    x = x + _B_ref(_layernorm(x, axis=-1), B_w_gate, B_w_up, B_w_down)
    x = x + _A_ref(_layernorm(x, axis=-1), A_wqkv, A_wo)
    x = x + _B_ref(_layernorm(x, axis=-1), B_w_gate, B_w_up, B_w_down)
    return x
```

```python
import re

_REG_RE = re.compile(r'^([vas])(?:(\d+)|\[(\d+):(\d+)\])$')

def regs_of(tok):
    tok = tok.strip()
    neg = tok.lstrip('-')
    if neg.startswith('abs(') or neg.startswith('|'):
        neg = neg.replace('abs(', '').replace(')', '').replace('|', '')
    m = _REG_RE.match(neg)
    if m:
        k = m.group(1)
        if m.group(2) is not None:
            return [(k, int(m.group(2)))]
        return [(k, i) for i in range(int(m.group(3)), int(m.group(4)) + 1)]
    if neg == 'vcc': return [('s', 'vcc')]
    if neg in ('vcc_lo', 'vcc_hi'): return [('s', 'vcc')]
    if neg == 'exec' or neg in ('exec_lo', 'exec_hi'): return [('s', 'exec')]
    if neg == 'm0': return [('s', 'm0')]
    if neg == 'scc': return [('s', 'scc')]
    return []

TRANS = ('v_exp_f32', 'v_log_f32', 'v_rcp_f32', 'v_rsq_f32', 'v_sqrt_f32', 'v_sin_f32', 'v_cos_f32', 'v_exp_f16', 'v_rcp_f16')

class Ins:
    __slots__ = ('op', 'ops', 'mods', 'text', 'dst', 'src', 'kind', 'cmt', 'passes')
    def __init__(self, text):
        self.text = text
        t = text.split(';')[0].strip()
        parts = t.split(None, 1)
        self.op = parts[0]
        rest = parts[1] if len(parts) > 1 else ''
        toks = []
        cur = ''
        depth = 0
        for ch in rest:
            if ch in '[(': depth += 1
            if ch in '])': depth -= 1
            if ch == ',' and depth == 0:
                toks.append(cur.strip()); cur = ''
            else:
                cur += ch
        if cur.strip(): toks.append(cur.strip())
        self.mods = []
        if toks:
            last = toks[-1].split()
            toks[-1] = last[0]
            self.mods = last[1:]
        self.ops = toks
        self.classify()

    def classify(self):
        op = self.op
        o = self.ops
        R = regs_of
        dst, src = [], []
        kind = 'other'
        self.passes = 0
        if op.startswith('v_mfma'):
            kind = 'mfma'
            dst = R(o[0]); src = R(o[1]) + R(o[2]) + R(o[3])
            self.passes = 8 if '32x32' in op else 4
            if '32x32x64' in op or '16x16x128' in op: self.passes *= 2
        elif op.startswith('v_cmp'):
            kind = 'valu'
            dst = R(o[0]); src = sum((R(x) for x in o[1:]), [])
            if op.startswith('v_cmpx'): dst += [('s', 'exec')]
        elif op in ('v_readfirstlane_b32', 'v_readlane_b32'):
            kind = 'valu'; dst = R(o[0]); src = sum((R(x) for x in o[1:]), [])
        elif op.startswith('v_permlane32_swap') or op.startswith('v_permlane16_swap'):
            kind = 'valu'; dst = R(o[0]) + R(o[1]); src = R(o[0]) + R(o[1])
        elif op.startswith('v_add_co') or op.startswith('v_sub_co') or op.startswith('v_addc_co') or op.startswith('v_subb_co'):
            kind = 'valu'; dst = R(o[0]) + R(o[1]); src = sum((R(x) for x in o[2:]), [])
        elif op.startswith('v_'):
            kind = 'valu'
            dst = R(o[0]); src = sum((R(x) for x in o[1:]), [])
            if op.startswith('v_fmac') or op.startswith('v_dot2c') or op.startswith('v_pk_fmac') or op.startswith('v_mac'):
                src += dst
            if 'sdwa' in op and any('UNUSED_PRESERVE' in m for m in self.mods):
                src += dst
            if op.startswith('v_cndmask') and len(o) == 3:
                src += [('s', 'vcc')]
            if op.startswith('v_writelane'):
                src += dst
            if '_dpp' in op:
                src += dst
        elif op.startswith('buffer_load') or op.startswith('global_load') :
            kind = 'vmem'
            if 'lds' in self.mods or 'lds' in op:
                kind = 'dma'
                src = sum((R(x) for x in o), []) + [('s', 'm0')]
            else:
                dst = R(o[0]); src = sum((R(x) for x in o[1:]), [])
        elif op.startswith('buffer_store') :
            kind = 'vmem'; src = sum((R(x) for x in o), [])
        elif op.startswith('global_store'):
            kind = 'vmem'; src = sum((R(x) for x in o), [])
        elif op.startswith('buffer_atomic') or op.startswith('global_atomic'):
            kind = 'vmem'; src = sum((R(x) for x in o), [])
            if 'sc0' in self.mods:
                dst = R(o[0])
        elif op.startswith('buffer_wbl2') or op.startswith('buffer_inv'):
            kind = 'vmem'
        elif op.startswith('ds_read') or op.startswith('ds_bpermute') or op.startswith('ds_permute') or op.startswith('ds_swizzle'):
            kind = 'ds'; dst = R(o[0]); src = sum((R(x) for x in o[1:]), [])
        elif op.startswith('ds_write'):
            kind = 'ds'; src = sum((R(x) for x in o), [])
        elif op.startswith('s_load') or op.startswith('s_memtime') or op.startswith('s_memrealtime') or op.startswith('s_buffer_load'):
            kind = 'smem'; dst = R(o[0]); src = sum((R(x) for x in o[1:]), [])
        elif op in ('s_waitcnt', 's_barrier', 's_nop', 's_endpgm', 's_setprio', 's_sleep', 's_branch') or op.startswith('s_cbranch'):
            kind = 'ctl'
            if op == 's_cbranch_vccnz' or op == 's_cbranch_vccz': src = [('s', 'vcc')]
            if op.startswith('s_cbranch_scc'): src = [('s', 'scc')]
            if op.startswith('s_cbranch_exec'): src = [('s', 'exec')]
        elif op.startswith('s_cmp'):
            kind = 'salu'; dst = [('s', 'scc')]; src = sum((R(x) for x in o), [])
        elif op.startswith('s_'):
            kind = 'salu'; dst = R(o[0]); src = sum((R(x) for x in o[1:]), [])
            if 'saveexec' in op: dst += [('s', 'exec')]; src += [('s', 'exec')]
        self.kind = kind
        self.dst = dst
        self.src = src

def vonly(rs):
    return set(r for r in rs if r[0] in 'va')
def sonly(rs):
    return set(r for r in rs if r[0] == 's')

class Prog:
    def __init__(self, name="k"):
        self.items = []
        self._lbl = 0
        self.name = name
    def __call__(self, s, *a):
        if a: s = s % a
        for l in s.split('\n'):
            l = l.strip()
            if not l: continue
            if l.startswith(';'):
                self.items.append(('raw', '    ' + l)); continue
            if l.endswith(':'):
                self.items.append(('label', l[:-1])); continue
            self.items.append(Ins(l))
    def label(self, n): self.items.append(('label', n))
    def newlabel(self, base='L'):
        self._lbl += 1
        return f'{self.name}_{base}{self._lbl}'
    def comment(self, s): self.items.append(('raw', '    ; ' + s))
    def raw(self, s): self.items.append(('raw', s))
    def extend(self, lst):
        for x in lst:
            self(x)

    def _need(self, p, c):
        n = 0
        pd_v = vonly(p.dst);
        if p.kind == 'mfma':
            P = p.passes
            cs = vonly(c.src); cd = vonly(c.dst)
            if c.kind == 'mfma':
                cC = set(regs_of(c.ops[3])); cAB = set(regs_of(c.ops[1]) + regs_of(c.ops[2]))
                if pd_v & cAB: n = max(n, {4: 8, 8: 12, 16: 20}[P])
                if pd_v & cC:
                    if set(regs_of(c.ops[3])) == set(regs_of(p.ops[0])) and c.passes == P: pass
                    else: n = max(n, {4: 6, 8: 10, 16: 18}[P])
                if (pd_v & cd) and not (pd_v & cC): n = max(n, {4: 6, 8: 10, 16: 18}[P])
            elif c.kind in ('valu', 'vmem', 'ds', 'dma'):
                if pd_v & (cs | cd): n = max(n, {4: 8, 8: 12, 16: 20}[P])
            if c.kind == 'valu':
                pC = set(regs_of(p.ops[3]))
                if pC & cd: n = max(n, {4: 3, 8: 7, 16: 15}[P])
        elif p.kind == 'valu':
            cs = vonly(c.src)
            if c.kind == 'mfma' and (pd_v & cs): n = max(n, 2)
            if c.kind == 'valu':
                if pd_v & cs:
                    if p.op in TRANS and c.op not in TRANS: n = max(n, 1)
                    if p.op in TRANS and c.op in TRANS: n = max(n, 1)
                    if c.op.startswith('v_readlane') or c.op.startswith('v_readfirstlane'): n = max(n, 1)
                    if c.op.startswith('v_permlane'): n = max(n, 2)
                    if '_dpp' in c.op: n = max(n, 2)
                    if 'sdwa' in p.op or any(m.startswith('op_sel') for m in p.mods) and not p.op.startswith('v_pk'): n = max(n, 1)
                    if p.op.startswith('v_dot') and p.op != c.op: n = max(n, 3)
                    if p.op.startswith('v_dot') and p.op == c.op:
                        ab = set(regs_of(c.ops[1]) + regs_of(c.ops[2]))
                        if pd_v & ab: n = max(n, 3)
                if p.op.startswith('v_dot') and p.op != c.op and (pd_v & vonly(c.dst)): n = max(n, 3)
            if p.op.startswith('v_dot') and c.kind in ('vmem', 'ds', 'mfma') and (pd_v & cs): n = max(n, 3)
            ps = sonly(p.dst)
            if ps:
                css = sonly(c.src)
                if ps & css:
                    if c.kind in ('vmem', 'dma'): n = max(n, 5)
                    elif c.kind == 'valu':
                        n = max(n, 2)
                        if c.op.startswith('v_readlane') or c.op.startswith('v_writelane'): n = max(n, 4)
                    elif c.kind in ('salu', 'ctl', 'smem'): n = max(n, 4)
                if ('s', 'exec') in ps and c.kind in ('mfma',): n = max(n, 4)
        elif p.kind == 'vmem' and p.op.startswith(('buffer_store', 'global_store')) and ('x4' in p.op or 'x3' in p.op):
            if vonly(p.src) & vonly(c.dst):
                n = max(n, 2 if c.kind == 'valu' else 1)
        elif p.kind == 'salu':
            if ('s', 'm0') in p.dst and c.kind == 'dma': n = max(n, 1)
        return n

    def finalize(self, check_waits=True):
        out = []
        hist = []
        def advance(k):
            nonlocal hist
            hist = [(p, d + k) for (p, d) in hist if d + k < 24]
        nn = 0
        for it in self.items:
            if isinstance(it, tuple):
                if it[0] == 'label':
                    out.append(it[1] + ':')
                else:
                    out.append(it[1])
                continue
            need = 0
            for (p, d) in hist:
                r = self._need(p, it)
                if r > d: need = max(need, r - d)
            while need > 0:
                k = min(need, 16)
                out.append(f'    s_nop {k-1}')
                nn += 1
                advance(k); need -= k
            out.append('    ' + it.text)
            k = 1
            if it.op == 's_nop': k = int(it.ops[0]) + 1
            advance(k)
            hist.append((it, 0))
        self.nops = nn
        return '\n'.join(out) + '\n'

    def check_waits(self, trace=None):
        errs = []
        vm = []
        lg = []
        items = trace if trace is not None else self.items
        for it in items:
            if isinstance(it, tuple): continue
            if it.op == 's_waitcnt':
                t = it.text
                m = re.search(r'vmcnt\((\d+)\)', t)
                if m:
                    n = int(m.group(1))
                    while len(vm) > n: vm.pop(0)
                m = re.search(r'lgkmcnt\((\d+)\)', t)
                if m:
                    n = int(m.group(1))
                    if any(x[1].kind == 'smem' for x in lg) and n > 0:
                        pass
                    else:
                        while len(lg) > n: lg.pop(0)
                continue
            touched = set(it.src) | set(it.dst)
            for q in (vm, lg):
                for (d, ins) in q:
                    if d & touched:
                        errs.append(f'pending {ins.text!r} touched by {it.text!r}')
            if it.kind in ('vmem', 'dma'):
                vm.append((set(it.dst), it))
                if len(vm) > 63: errs.append(f'vmcnt overflow at {it.text!r}')
            elif it.kind == 'ds':
                lg.append((set(it.dst), it))
            elif it.kind == 'smem':
                lg.append((set(it.dst), it))
        return errs

def kernel_header(name):
    return f""".text
.globl {name}
.p2align 8
.type {name},@function
{name}:
"""

def kernel_desc(name, vgpr, sgpr=102, accum=None):
    if accum is None:
        accum = min(256, (vgpr + 3) // 4 * 4)
    return f""".section .rodata,"a"
.p2align 6
.amdhsa_kernel {name}
  .amdhsa_next_free_vgpr {vgpr}
  .amdhsa_next_free_sgpr {sgpr}
  .amdhsa_accum_offset {accum}
  .amdhsa_group_segment_fixed_size 0
  .amdhsa_kernarg_size 80
  .amdhsa_user_sgpr_count 2
  .amdhsa_user_sgpr_kernarg_segment_ptr 1
  .amdhsa_system_sgpr_workgroup_id_x 1
  .amdhsa_float_denorm_mode_32 3
  .amdhsa_float_denorm_mode_16_64 3
.end_amdhsa_kernel
.text
"""
```

```python
from kcommon import *
from k_xr import VM

KL = 0
VL = 65536
CL = 131072
LDS_ATT = CL + 16384

def gen_a2(name="a2_kernel"):
    p = Prog(name); vm = VM(p)
    prologue(p, 256)
    p("s_and_b32 s24, s2, 7\ns_lshr_b32 s25, s2, 3")
    p("s_lshl_b32 s21, s24, 2\ns_lshr_b32 s26, s25, 3\ns_add_u32 s21, s21, s26")
    p("s_and_b32 s22, s25, 7")
    p("s_lshl_b32 s23, s22, 3\ns_add_u32 s23, s23, s20")
    p("v_lshlrev_b32 v3, 4, v1")
    p("s_lshl_b32 s27, s21, 16")
    p("s_lshl_b32 s28, s23, 10\ns_add_u32 s28, s28, s27\ns_add_u32 s28, s28, %d" % QF)
    vm.issue("buffer_load_dwordx4 v[8:11], v3, s[8:11], s28 offen", 'q')
    p("s_lshl_b32 s29, s20, 10")
    p("s_add_u32 s30, s27, s29\ns_add_u32 s31, s30, %d\ns_add_u32 s30, s30, %d" % (VF, KF))
    for ch in range(8):
        p("s_add_u32 m0, s29, %d" % (KL + ch*8192))
        vm.issue("buffer_load_dwordx4 v3, s[8:11], s30 offen lds", ('K', ch))
        p("s_add_u32 m0, s29, %d" % (VL + ch*8192))
        vm.issue("buffer_load_dwordx4 v3, s[8:11], s31 offen lds", ('V', ch))
        if ch < 7: p("s_add_u32 s30, s30, 8192\ns_add_u32 s31, s31, 8192")
    p("v_and_b32 v4, 1, v0")
    p("v_cmp_eq_u32 vcc, 0, v4")
    p("v_mov_b32 v5, 0x3f80")
    p("v_cndmask_b32 v12, 0, v5, vcc\nv_mov_b32 v13, 0\nv_mov_b32 v14, v12\nv_mov_b32 v15, 0")
    p("v_lshlrev_b32 v4, 4, v0")
    p("v_add_u32 v4, %d, v4" % CL)
    p("ds_write_b128 v4, v[12:15]")
    p("ds_write_b128 v4, v[12:15] offset:8192")
    p("v_lshrrev_b32 v5, 5, v1")
    p("v_bfe_u32 v6, v1, 2, 2")
    p("v_lshl_add_u32 v6, v5, 2, v6")
    p("v_lshlrev_b32 v6, 5, v6")
    p("v_and_b32 v7, 1, v1\nv_lshl_add_u32 v6, v7, 4, v6")
    p("v_bfe_u32 v7, v1, 1, 1\nv_lshl_add_u32 v6, v7, 3, v6")
    p("v_add_u32 v6, %d, v6" % VL)
    p("v_xor_b32 v7, 1, v5\nv_lshlrev_b32 v7, 7, v7")
    p("v_and_b32 v16, 3, v1\nv_lshl_add_u32 v7, v16, 3, v7")
    p("v_add_u32 v7, %d, v7" % CL)
    p("v_bfe_u32 v16, v1, 4, 1")
    p("v_cmp_eq_u32 vcc, 1, v16")
    p("v_cndmask_b32 v6, v6, v7, vcc")
    p("v_mov_b32 v16, 8192")
    p("v_mov_b32 v17, 0")
    p("v_cndmask_b32 v7, v16, v17, vcc")
    p("v_mov_b32 v2, v3")
    O = 64
    for r in range(16): p("v_mov_b32 v%d, 0" % (O+r))
    S = [32, 48]; KR = [16, 20]; VR = [80, 96]; P = 24
    def rdK(t, buf):
        p("ds_read_b128 v[%d:%d], v2 offset:%d" % (KR[buf], KR[buf]+3, KL + t*1024))
    def rdV(t, buf):
        b = VR[buf]
        for i in range(2):
            p("ds_read_b64_tr_b16 v[%d:%d], v6 offset:%d" % (b+8*i, b+8*i+1, t*1024 + i*512))
            p("ds_read_b64_tr_b16 v[%d:%d], v6 offset:%d" % (b+8*i+2, b+8*i+3, t*1024 + i*512 + 256))
    def rdV(t, buf):
        b = VR[buf]
        for i in range(2):
            p("ds_read_b64_tr_b16 v[%d:%d], v6 offset:%d" % (b+4*i, b+4*i+1, t*1024 + i*512))
            p("ds_read_b64_tr_b16 v[%d:%d], v6 offset:%d" % (b+4*i+2, b+4*i+3, t*1024 + i*512 + 256))
    def body(t, last_in_kernel=False, pre=True):
        cur = t % 2; nx = 1 - cur
        p("s_waitcnt lgkmcnt(0)")
        p("v_mfma_f32_32x32x16_bf16 v[%d:%d], v[%d:%d], v[8:11], 0" % (S[nx], S[nx]+15, KR[nx], KR[nx]+3))
        rdV(t+1, nx)
        rdK(t+2, cur)
        s = S[cur]
        for r in range(8): p("v_exp_f32 v%d, v%d" % (s+r, s+r))
        for j in range(4): p("v_cvt_pk_bf16_f32 v%d, v%d, v%d" % (P+j, s+2*j, s+2*j+1))
        p("v_exp_f32 v%d, v%d" % (s+8, s+8))
        p("v_exp_f32 v%d, v%d" % (s+9, s+9))
        p("v_mfma_f32_32x32x16_bf16 v[%d:%d], v[%d:%d], v[%d:%d], v[%d:%d]" % (O, O+15, VR[cur], VR[cur]+3, P, P+3, O, O+15))
        for r in range(10, 16): p("v_exp_f32 v%d, v%d" % (s+r, s+r))
        for j in range(4): p("v_cvt_pk_bf16_f32 v%d, v%d, v%d" % (P+4+j, s+8+2*j, s+8+2*j+1))
        p("v_mfma_f32_32x32x16_bf16 v[%d:%d], v[%d:%d], v[%d:%d], v[%d:%d]" % (O, O+15, VR[cur]+4, VR[cur]+7, P+4, P+7, O, O+15))
    vm.wait([('V', 0), 'q'])
    p("s_waitcnt lgkmcnt(0)")
    p("s_barrier")
    rdK(0, 0); rdV(0, 0);
    p("s_waitcnt lgkmcnt(4)")
    p("v_mfma_f32_32x32x16_bf16 v[%d:%d], v[%d:%d], v[8:11], 0" % (S[0], S[0]+15, KR[0], KR[0]+3))
    rdK(1, 1)
    for t in range(6): body(t)
    vm.wait([('V', 7)])
    p("s_barrier")
    for t in range(6, 8): body(t)
    p("v_add_u32 v2, 8192, v2\nv_add_u32 v6, v6, v7")
    p("s_mov_b32 s33, 7")
    lab = name + "_LOOP"
    p.label(lab)
    for t in range(8): body(t)
    p("v_add_u32 v2, 8192, v2\nv_add_u32 v6, v6, v7")
    p("s_sub_u32 s33, s33, 1\ns_cmp_lg_u32 s33, 0")
    p("s_cbranch_scc1 %s" % lab)
    p("s_waitcnt lgkmcnt(0)")
    p("s_nop 15")
    p("s_mov_b32 s34, 0x%x\ns_mov_b32 s35, 0x%x" % (fbits(2.0**-60), fbits(2.0**60)))
    p("v_cmp_le_f32 vcc, s34, v%d" % (O+8))
    p("v_cmp_ge_f32 s[36:37], s35, v%d" % (O+8))
    p("s_and_b64 vcc, vcc, s[36:37]")
    p("s_cmp_eq_u64 vcc, -1")
    p("s_cbranch_scc0 %s_SLOW" % name)
    p.label(name + "_FIN")
    p("v_rcp_f32 v24, v%d" % (O+8))
    for r in range(8): p("v_mul_f32 v%d, v%d, v24" % (O+r, O+r))
    for j in range(4): p("v_cvt_pk_bf16_f32 v%d, v%d, v%d" % (28+j, O+2*j, O+2*j+1))
    p("s_lshl_b32 s28, s23, 5\ns_add_u32 s28, s28, s21\ns_lshl_b32 s28, s28, 10\ns_add_u32 s28, s28, %d" % OF)
    p("buffer_store_dwordx4 v[28:31], v3, s[8:11], s28 offen")
    p("s_endpgm")
    p.label(name + "_SLOW")
    p("v_mov_b32 v2, v3")
    p("v_mov_b32 v24, 0xff800000")
    p("s_mov_b32 s33, 64")
    p.label(name + "_SL1")
    p("ds_read_b128 v[16:19], v2 offset:%d" % KL)
    p("s_waitcnt lgkmcnt(0)")
    p("v_mfma_f32_32x32x16_bf16 v[32:47], v[16:19], v[8:11], 0")
    p("s_nop 15")
    for r in range(0, 16, 2): p("v_max3_f32 v24, v24, v%d, v%d" % (32+r, 33+r))
    p("v_add_u32 v2, 1024, v2")
    p("s_sub_u32 s33, s33, 1\ns_cmp_lg_u32 s33, 0")
    p("s_cbranch_scc1 %s_SL1" % name)
    p("v_mov_b32 v25, v24")
    p("v_permlane32_swap_b32 v24, v25")
    p("v_max_f32 v24, v24, v25")
    for r in range(16): p("v_sub_f32 v%d, 0, v24" % (48+r))
    for r in range(16): p("v_mov_b32 v%d, 0" % (O+r))
    p("v_mov_b32 v2, v3")
    p("v_lshlrev_b32 v25, 3, v7\nv_sub_u32 v6, v6, v25")
    p("v_lshrrev_b32 v7, 3, v7")
    p("s_mov_b32 s33, 64")
    p.label(name + "_SL2")
    p("ds_read_b128 v[16:19], v2 offset:%d" % KL)
    for i in range(2):
        p("ds_read_b64_tr_b16 v[%d:%d], v6 offset:%d" % (80+4*i, 81+4*i, i*512))
        p("ds_read_b64_tr_b16 v[%d:%d], v6 offset:%d" % (82+4*i, 83+4*i, i*512+256))
    p("s_waitcnt lgkmcnt(0)")
    p("v_mfma_f32_32x32x16_bf16 v[32:47], v[16:19], v[8:11], v[48:63]")
    p("s_nop 15")
    for r in range(16): p("v_exp_f32 v%d, v%d" % (32+r, 32+r))
    for j in range(8): p("v_cvt_pk_bf16_f32 v%d, v%d, v%d" % (24+j, 32+2*j, 33+2*j))
    p("s_nop 1")
    p("v_mfma_f32_32x32x16_bf16 v[64:79], v[80:83], v[24:27], v[64:79]")
    p("v_mfma_f32_32x32x16_bf16 v[64:79], v[84:87], v[28:31], v[64:79]")
    p("v_add_u32 v2, 1024, v2\nv_add_u32 v6, v6, v7")
    p("s_sub_u32 s33, s33, 1\ns_cmp_lg_u32 s33, 0")
    p("s_cbranch_scc1 %s_SL2" % name)
    p("s_nop 15")
    p("s_branch %s_FIN" % name)
    return finish(p, 128, 128)

if __name__ == '__main__':
    t, e = gen_a2()
    print(e[:10])
    open('x.s','w').write('.amdgcn_target "amdgcn-amd-amdhsa--gfx950"\n' + t)
    import subprocess
    print(subprocess.run("clang -x assembler -target amdgcn-amd-amdhsa -mcpu=gfx950 -c x.s -o x.o", shell=True, capture_output=True, text=True).stderr[:3000])
```

```python
from kcommon import *

NWG_P0 = 480
def gen_p0(name="p0_kernel"):
    p = Prog(name)
    prologue(p, NWG_P0, extra_loads=[(12,0),(14,8),(16,16),(18,32),(22,40),(24,48)])
    p("v_lshlrev_b32 v3, 4, v1")
    p("s_cmp_ge_u32 s2, 128")
    p("s_cbranch_scc1 %s_W" % name)
    srd(p, 28, 12, 2048*512*2)
    p("s_lshr_b32 s32, s2, 1")
    p("s_and_b32 s33, s2, 1")
    p("s_lshl_b32 s33, s33, 4")
    p("s_lshl_b32 s34, s20, 2")
    p("s_add_u32 s33, s33, s34")
    p("v_and_b32 v4, 31, v1")
    p("v_lshrrev_b32 v5, 5, v1")
    p("v_lshlrev_b32 v6, 10, v4")
    p("v_lshl_add_u32 v6, v5, 4, v6")
    p("s_lshl_b32 s34, s32, 15")
    p("s_lshl_b32 s35, s33, 5")
    p("s_add_u32 s34, s34, s35")
    for i in range(4):
        p("buffer_load_dwordx4 v[%d:%d], v6, s[28:31], s34 offen offset:%d" % (16+4*i, 19+4*i, 32*i))
    p("s_lshl_b32 s36, s32, 5\ns_add_u32 s36, s36, s33\ns_lshl_b32 s36, s36, 10")
    p("s_add_u32 s36, s36, %d" % XFA)
    p("v_mov_b32 v8, 0\nv_mov_b32 v9, 0\nv_mov_b32 v10, 0\nv_mov_b32 v11, 0")
    p("s_mov_b32 s37, 0x3f803f80")
    for i in range(4):
        p("s_waitcnt vmcnt(%d)" % (3-i if i == 0 else 3))
        b = 16+4*i
        p("v_permlane32_swap_b32 v%d, v%d" % (b, b+2))
        p("v_permlane32_swap_b32 v%d, v%d" % (b+1, b+3))
        p("buffer_store_dwordx4 v[%d:%d], v3, s[8:11], s36 offen offset:%d" % (b, b+3, 1024*i))
        S = 8 if i < 2 else 10
        for j in range(4):
            p("v_dot2c_f32_bf16 v%d, s37, v%d" % (S, b+j))
            p("v_dot2c_f32_bf16 v%d, v%d, v%d" % (S+1, b+j, b+j))
    p("v_permlane32_swap_b32 v8, v10")
    p("v_permlane32_swap_b32 v9, v11")
    p("v_add_f32 v8, v8, v10")
    p("v_add_f32 v9, v9, v11")
    p("s_lshr_b32 s38, s33, 2\ns_lshl_b32 s38, s38, 15")
    p("s_lshl_b32 s39, s32, 9\ns_add_u32 s38, s38, s39")
    p("s_add_u32 s38, s38, %d" % STA)
    p("v_lshlrev_b32 v7, 4, v4")
    p("v_lshl_add_u32 v7, v5, 3, v7")
    p("buffer_store_dwordx2 v[8:9], v7, s[8:11], s38 offen")
    p("s_endpgm")
    p.label(name + "_W")
    L = lambda x: name + "_" + x
    p("s_cmp_ge_u32 s2, 224\ns_cbranch_scc1 %s" % L("T1"))
    p("s_sub_u32 s48, s2, 128")
    p("s_mul_i32 s46, s48, 171\ns_lshr_b32 s46, s46, 12")
    p("s_mul_i32 s49, s46, 24\ns_sub_u32 s45, s48, s49")
    p("s_mov_b32 s28, s14\ns_mov_b32 s29, s15\ns_mov_b32 s30, %d\ns_mov_b32 s44, 3072\ns_mov_b32 s47, 0" % (512*3072))
    p("s_branch %s" % L("PLAIN"))
    p.label(L("T1"))
    p("s_cmp_ge_u32 s2, 336\ns_cbranch_scc0 %s" % L("GU"))
    p("s_cmp_ge_u32 s2, 368\ns_cbranch_scc1 %s" % L("T3"))
    p("s_sub_u32 s48, s2, 336")
    p("s_and_b32 s45, s48, 7\ns_lshr_b32 s46, s48, 3")
    p("s_mov_b32 s28, s16\ns_mov_b32 s29, s17\ns_mov_b32 s30, %d\ns_mov_b32 s44, 1024\ns_mov_b32 s47, 2" % (512*1024))
    p("s_branch %s" % L("PLAIN"))
    p.label(L("T3"))
    p("s_sub_u32 s48, s2, 368")
    p("s_and_b32 s45, s48, 7\ns_lshr_b32 s46, s48, 3")
    p("s_mov_b32 s28, s24\ns_mov_b32 s29, s25\ns_mov_b32 s30, %d\ns_mov_b32 s44, 1024\ns_mov_b32 s47, 3" % (1792*1024))
    p.label(L("PLAIN"))
    p("s_mov_b32 s31, 0x00020000")
    def lanecalc():
        p("v_lshrrev_b32 v4, 3, v1")
        p("v_and_b32 v5, 7, v1")
        p("v_mul_lo_u32 v4, v4, s44")
        p("v_lshl_add_u32 v6, v5, 4, v4")
        p("s_lshl_b32 s50, s46, 7\ns_lshl_b32 s51, s20, 5\ns_add_u32 s50, s50, s51")
        p("s_mul_i32 s51, s50, s44")
        p("s_lshl_b32 s52, s45, 7\ns_add_u32 s51, s51, s52")
        p("s_lshl_b32 s53, s44, 3")
        p("v_lshrrev_b32 v7, 5, v1")
        p("v_bfe_u32 v8, v1, 2, 2")
        p("v_lshl_add_u32 v8, v7, 2, v8")
        p("v_lshlrev_b32 v8, 7, v8")
        p("v_and_b32 v9, 3, v1")
        p("v_lshl_add_u32 v8, v9, 3, v8")
        p("v_bfe_u32 v9, v1, 4, 1")
    lanecalc()
    p("v_lshl_add_u32 v8, v9, 5, v8")
    p("s_lshl_b32 s54, s20, 13")
    p("v_add_u32 v8, s54, v8")
    for u in range(4):
        p("s_add_u32 m0, s54, %d" % (u*1024))
        p("buffer_load_dwordx4 v6, s[28:31], s51 offen lds")
        if u < 3: p("s_add_u32 s51, s51, s53")
    p("s_waitcnt vmcnt(0)")
    for kg in range(2):
        for tau in range(2):
            b = 16 + 4*(2*kg+tau)
            p("ds_read_b64_tr_b16 v[%d:%d], v8 offset:%d" % (b, b+1, kg*2048 + tau*64))
            p("ds_read_b64_tr_b16 v[%d:%d], v8 offset:%d" % (b+2, b+3, kg*2048 + tau*64 + 1024))
    p("s_lshr_b32 s55, s50, 4")
    p("s_cmp_eq_u32 s47, 0\ns_cbranch_scc0 %s" % L("D23"))
    for tau in range(2):
        p("s_lshl_b32 s59, s45, 1\ns_add_u32 s59, s59, %d" % tau)
        p("s_mul_i32 s60, s59, 43\ns_lshr_b32 s60, s60, 7")
        p("s_mul_i32 s61, s60, 3\ns_sub_u32 s61, s59, s61")
        p("s_lshl_b32 s60, s60, 5\ns_add_u32 s60, s60, s55\ns_mul_i32 s60, s60, 3\ns_add_u32 s60, s60, s61")
        p("s_lshl_b32 s60, s60, 10\ns_add_u32 s%d, s60, %d" % (56+tau, WQKV_F))
    p("s_mov_b32 s58, 3072")
    p("s_branch %s" % L("DST"))
    p.label(L("D23"))
    p("s_cmp_eq_u32 s47, 2")
    p("s_cselect_b32 s62, 32, 112")
    p("s_mov_b32 s63, %d" % WD_F)
    p("s_cselect_b32 s63, %d, s63" % WO_F)
    for tau in range(2):
        p("s_lshl_b32 s59, s45, 1\ns_add_u32 s59, s59, %d" % tau)
        p("s_mul_i32 s60, s59, s62\ns_add_u32 s60, s60, s55\ns_lshl_b32 s60, s60, 10\ns_add_u32 s%d, s60, s63" % (56+tau))
    p("s_mov_b32 s58, 1024")
    p.label(L("DST"))
    p("s_waitcnt lgkmcnt(0)")
    for kg in range(2):
        for tau in range(2):
            b = 16 + 4*(2*kg+tau)
            p("buffer_store_dwordx4 v[%d:%d], v3, s[8:11], s%d offen" % (b, b+3, 56+tau))
        if kg == 0:
            p("s_add_u32 s56, s56, s58\ns_add_u32 s57, s57, s58")
    p("s_cmp_eq_u32 s47, 0\ns_cbranch_scc0 %s_END" % name)
    p("s_mov_b32 s37, 0x3f803f80")
    p("v_mov_b32 v10, 0\nv_mov_b32 v11, 0")
    for kg in range(2):
        for tau in range(2):
            b = 16 + 4*(2*kg+tau)
            for j in range(4):
                p("v_dot2c_f32_bf16 v%d, s37, v%d" % (10+tau, b+j))
    p("v_permlane32_swap_b32 v10, v11")
    p("v_add_f32 v10, v10, v11")
    p("v_lshlrev_b32 v12, 2, v1")
    p("s_lshl_b32 s59, s20, 8")
    p("v_add_u32 v13, s59, v12")
    p("ds_write_b32 v13, v10 offset:32768")
    p("s_waitcnt lgkmcnt(0)")
    p("s_barrier")
    p("s_cmp_eq_u32 s20, 0\ns_cbranch_scc0 %s_END" % name)
    for w in range(4):
        p("ds_read_b32 v%d, v12 offset:%d" % (32+w, 32768+256*w))
    p("s_waitcnt lgkmcnt(0)")
    p("v_add_f32 v32, v32, v33\nv_add_f32 v34, v34, v35\nv_add_f32 v32, v32, v34")
    p("s_lshl_b32 s59, s45, 10\ns_lshl_b32 s60, s46, 2\ns_add_u32 s59, s59, s60\ns_add_u32 s59, s59, %d" % CSP_QKV)
    p("buffer_store_dword v32, v3, s[8:11], s59 offen")
    p("s_endpgm")
    p.label(L("GU"))
    p("s_sub_u32 s48, s2, 224")
    p("s_mul_i32 s46, s48, 147\ns_lshr_b32 s46, s46, 12")
    p("s_mul_i32 s49, s46, 28\ns_sub_u32 s45, s48, s49")
    p("s_mov_b32 s28, s18\ns_mov_b32 s29, s19\ns_mov_b32 s30, %d\ns_mov_b32 s31, 0x00020000\ns_mov_b32 s44, 3584" % (512*3584))
    p("s_mov_b32 s64, s22\ns_mov_b32 s65, s23\ns_mov_b32 s66, %d\ns_mov_b32 s67, 0x00020000" % (512*3584))
    lanecalc()
    p("v_lshl_add_u32 v8, v9, 12, v8")
    p("s_lshl_b32 s54, s20, 13")
    p("v_add_u32 v8, s54, v8")
    for u in range(4):
        p("s_add_u32 m0, s54, %d" % (u*1024))
        p("buffer_load_dwordx4 v6, s[28:31], s51 offen lds")
        p("s_add_u32 m0, s54, %d" % (4096+u*1024))
        p("buffer_load_dwordx4 v6, s[64:67], s51 offen lds")
        if u < 3: p("s_add_u32 s51, s51, s53")
    p("s_waitcnt vmcnt(0)")
    for kg in range(2):
        for i in range(4):
            b = 16 + 4*(4*kg+i)
            p("ds_read_b64_tr_b16 v[%d:%d], v8 offset:%d" % (b, b+1, kg*2048 + i*32))
            p("ds_read_b64_tr_b16 v[%d:%d], v8 offset:%d" % (b+2, b+3, kg*2048 + i*32 + 1024))
    p("s_lshr_b32 s55, s50, 4")
    for i in range(4):
        p("s_lshl_b32 s59, s45, 2\ns_add_u32 s59, s59, %d" % i)
        p("s_mul_i32 s60, s59, 147\ns_lshr_b32 s60, s60, 10")
        p("s_mul_i32 s61, s60, 7\ns_sub_u32 s61, s59, s61")
        p("s_lshl_b32 s62, s55, 2\ns_add_u32 s62, s62, s61")
        p("s_lshl_b32 s63, s61, 5\ns_add_u32 s63, s63, s55")
        p("s_cmp_lt_u32 s61, 4")
        p("s_cselect_b32 s62, s62, s63")
        p("s_movk_i32 s%d, 0x400" % (72+i))
        p("s_cselect_b32 s%d, 4096, s%d" % (72+i, 72+i))
        p("s_mul_i32 s60, s60, 224\ns_add_u32 s60, s60, s62\ns_lshl_b32 s60, s60, 10\ns_add_u32 s%d, s60, %d" % (68+i, WGU_F))
    p("s_waitcnt lgkmcnt(0)")
    for kg in range(2):
        for i in range(4):
            b = 16 + 4*(4*kg+i)
            p("buffer_store_dwordx4 v[%d:%d], v3, s[8:11], s%d offen" % (b, b+3, 68+i))
            if kg == 0:
                p("s_add_u32 s%d, s%d, s%d" % (68+i, 68+i, 72+i))
    p("s_mov_b32 s37, 0x3f803f80")
    for i in range(4): p("v_mov_b32 v%d, 0" % (10+i))
    for kg in range(2):
        for i in range(4):
            b = 16 + 4*(4*kg+i)
            for j in range(4):
                p("v_dot2c_f32_bf16 v%d, s37, v%d" % (10+i, b+j))
    p("v_permlane32_swap_b32 v10, v11")
    p("v_permlane32_swap_b32 v12, v13")
    p("v_add_f32 v10, v10, v11")
    p("v_add_f32 v12, v12, v13")
    p("v_lshlrev_b32 v14, 2, v1")
    p("s_lshl_b32 s59, s20, 9")
    p("v_add_u32 v15, s59, v14")
    p("ds_write_b32 v15, v10 offset:32768")
    p("ds_write_b32 v15, v12 offset:33024")
    p("s_waitcnt lgkmcnt(0)")
    p("s_barrier")
    p("s_cmp_lt_u32 s20, 2\ns_cbranch_scc0 %s_END" % name)
    p("s_lshl_b32 s59, s20, 8")
    p("v_add_u32 v15, s59, v14")
    for w in range(4):
        p("ds_read_b32 v%d, v15 offset:%d" % (48+w, 32768+512*w))
    p("s_waitcnt lgkmcnt(0)")
    p("v_add_f32 v48, v48, v49\nv_add_f32 v50, v50, v51\nv_add_f32 v48, v48, v50")
    p("s_lshl_b32 s59, s45, 11\ns_lshl_b32 s60, s20, 10\ns_add_u32 s59, s59, s60\ns_lshl_b32 s60, s46, 2\ns_add_u32 s59, s59, s60\ns_add_u32 s59, s59, %d" % CSP_GU)
    p("buffer_store_dword v48, v3, s[8:11], s59 offen")
    return finish(p, 64)

if __name__ == '__main__':
    t, e = gen_p0()
    print(e)
    open('p0.s','w').write('.amdgcn_target "amdgcn-amd-amdhsa--gfx950"\n' + t)
```

```python
from kcommon import *
from k_xr import VM

def gen_sk(name, NGT, XBASE, WBASE, RES, OUT, ST, final=False):
    p = Prog(name); vm = VM(p)
    NG = NGT // 4
    RD = min(NG, 15)
    prologue(p, 256, extra_loads=[(12, 56)] if final else [])
    if final:
        srd(p, 16, 12, 2048*512*2)
    p("s_and_b32 s24, s2, 7\ns_lshr_b32 s25, s2, 3")
    p("s_lshr_b32 s21, s24, 1\ns_lshl_b32 s21, s21, 3\ns_and_b32 s26, s25, 7\ns_add_u32 s21, s21, s26")
    p("s_and_b32 s22, s24, 1\ns_lshl_b32 s22, s22, 2\ns_lshr_b32 s26, s25, 3\ns_add_u32 s22, s22, s26")
    p("v_lshlrev_b32 v3, 4, v1")
    p("s_mul_i32 s27, s20, %d" % (NG*1024))
    p("s_mul_i32 s28, s21, %d\ns_add_u32 s28, s28, s27\ns_add_u32 s28, s28, %d\ns_add_u32 s29, s28, %d" % (2*NGT*1024, XBASE, NGT*1024))
    p("s_mul_i32 s30, s22, %d\ns_add_u32 s30, s30, s27\ns_add_u32 s30, s30, %d\ns_add_u32 s31, s30, %d" % (2*NGT*1024, WBASE, NGT*1024))
    def issue(g):
        slot = g % RD
        b = 16*slot
        for k, sreg in enumerate(('s30', 's28', 's31', 's29')):
            vm.issue("buffer_load_dwordx4 a[%d:%d], v3, s[8:11], %s offen offset:%d" % (b+4*k, b+4*k+3, sreg, 1024*(g % 4)), ('G', g, k))
        if g % 4 == 3:
            p("s_add_u32 s28, s28, 4096\ns_add_u32 s29, s29, 4096\ns_add_u32 s30, s30, 4096\ns_add_u32 s31, s31, 4096")
    p("s_lshr_b32 s33, s20, 1\ns_lshl_b32 s34, s21, 1\ns_add_u32 s33, s33, s34")
    p("s_and_b32 s34, s20, 1\ns_lshl_b32 s35, s22, 1\ns_add_u32 s34, s34, s35")
    p("s_lshl_b32 s35, s33, 5\ns_lshl_b32 s36, s34, 1\ns_add_u32 s35, s35, s36\ns_lshl_b32 s35, s35, 10")
    p("s_add_u32 s36, s35, %d" % RES)
    for g in range(RD - 1 if NG > RD - 1 and RD == 15 else RD): issue(g)
    first = RD - 1 if NG > RD - 1 and RD == 15 else RD
    vm.issue("buffer_load_dwordx4 v[8:11], v3, s[8:11], s36 offen", 'res')
    vm.issue("buffer_load_dwordx4 v[12:15], v3, s[8:11], s36 offen offset:1024", 'res')
    ACC = 64
    nxt = first
    for g in range(NG):
        b = 16*(g % RD)
        W = [b, b+8]; X = [b+4, b+12]
        for a in range(2):
            for bb in range(2):
                need = [('G', g, 0 if bb == 0 else 2), ('G', g, 1 if a == 0 else 3)]
                vm.wait(need)
                A = ACC + 16*(2*a+bb)
                c = "0" if g == 0 else "v[%d:%d]" % (A, A+15)
                p("v_mfma_f32_32x32x16_bf16 v[%d:%d], a[%d:%d], a[%d:%d], %s" % (A, A+15, W[bb], W[bb]+3, X[a], X[a]+3, c))
        if nxt < NG and (nxt % RD) == ((g - 0) % RD) or (nxt < NG and nxt - g < RD and (nxt % RD) not in [(x % RD) for x in range(g+1, nxt)] and nxt - RD <= g):
            issue(nxt); nxt += 1
    assert nxt >= NG
    p("s_lshl_b32 s37, s20, 12")
    p("v_add_u32 v4, s37, v3")
    for tau in range(4):
        for q in range(4):
            A = ACC + 16*tau + 4*q
            p("ds_write_b128 v4, v[%d:%d] offset:%d" % (A, A+3, tau*16384 + q*1024))
    p("s_lshl_b32 s37, s20, 14")
    p("v_add_u32 v5, s37, v3")
    p("s_waitcnt lgkmcnt(0)")
    p("s_barrier")
    R = 128
    for src in range(4):
        for q in range(4):
            p("ds_read_b128 v[%d:%d], v5 offset:%d" % (R+16*src+4*q, R+16*src+4*q+3, src*4096 + q*1024))
    vm.wait(['res'])
    for j in range(8):
        p("v_lshlrev_b32 v%d, 16, v%d" % (32+2*j, 8+j))
        p("v_and_b32 v%d, 0xffff0000, v%d" % (33+2*j, 8+j))
    p("s_waitcnt lgkmcnt(8)")
    for r in range(16): p("v_add_f32 v%d, v%d, v%d" % (R+r, R+r, R+16+r))
    p("s_waitcnt lgkmcnt(0)")
    for r in range(16): p("v_add_f32 v%d, v%d, v%d" % (R+32+r, R+32+r, R+48+r))
    for r in range(16): p("v_add_f32 v%d, v%d, v%d" % (R+r, R+r, 32+r))
    for r in range(16): p("v_add_f32 v%d, v%d, v%d" % (R+r, R+r, R+32+r))
    for j in range(8): p("v_cvt_pk_bf16_f32 v%d, v%d, v%d" % (16+j, R+2*j, R+2*j+1))
    if not final:
        p("s_add_u32 s36, s35, %d" % OUT)
        p("buffer_store_dwordx4 v[16:19], v3, s[8:11], s36 offen")
        p("buffer_store_dwordx4 v[20:23], v3, s[8:11], s36 offen offset:1024")
        p("s_mov_b32 s37, 0x3f803f80")
        p("v_mov_b32 v6, 0\nv_mov_b32 v7, 0")
        for j in range(8):
            p("v_dot2c_f32_bf16 v6, s37, v%d" % (16+j))
            p("v_dot2c_f32_bf16 v7, v%d, v%d" % (16+j, 16+j))
        p("v_permlane32_swap_b32 v6, v7")
        p("v_add_f32 v6, v6, v7")
        p("s_lshr_b32 s38, s34, 1\ns_lshl_b32 s38, s38, 15\ns_lshl_b32 s39, s33, 9\ns_add_u32 s38, s38, s39")
        p("s_and_b32 s39, s34, 1\ns_lshl_b32 s39, s39, 3\ns_add_u32 s38, s38, s39\ns_add_u32 s38, s38, %d" % ST)
        p("v_and_b32 v4, 31, v1\nv_lshrrev_b32 v5, 5, v1\nv_lshlrev_b32 v4, 4, v4\nv_lshl_add_u32 v4, v5, 2, v4")
        p("buffer_store_dword v6, v4, s[8:11], s38 offen")
    else:
        for i in range(2):
            p("v_permlane32_swap_b32 v%d, v%d" % (16+4*i, 18+4*i))
            p("v_permlane32_swap_b32 v%d, v%d" % (17+4*i, 19+4*i))
        p("v_and_b32 v4, 31, v1\nv_lshrrev_b32 v5, 5, v1\nv_lshlrev_b32 v4, 10, v4\nv_lshl_add_u32 v4, v5, 4, v4")
        p("s_lshl_b32 s38, s33, 15\ns_lshl_b32 s39, s34, 6\ns_add_u32 s38, s38, s39")
        p("buffer_store_dwordx4 v[16:19], v4, s[16:19], s38 offen")
        p("buffer_store_dwordx4 v[20:23], v4, s[16:19], s38 offen offset:32")
    return finish(p, 512, 256)

def gen_a3(): return gen_sk("a3_kernel", 32, OF, WO_F, XFA, XFB, STB)
def gen_b2a(): return gen_sk("b2a_kernel", 112, HF, WD_F, XFB, XFA, STA)
def gen_b2b(): return gen_sk("b2b_kernel", 112, HF, WD_F, XFB, None, None, final=True)

if __name__ == '__main__':
    for g in (gen_a3, gen_b2a, gen_b2b):
        t, e = g()
        print(e[:10])
        open('x.s','w').write('.amdgcn_target "amdgcn-amd-amdhsa--gfx950"\n' + t)
        import subprocess
        print(subprocess.run("clang -x assembler -target amdgcn-amd-amdhsa -mcpu=gfx950 -c x.s -o x.o", shell=True, capture_output=True, text=True).stderr[:3000])
```

```python
from kcommon import *
LOG2E = 1.4426950408889634

class VM:
    def __init__(self, p):
        self.p = p; self.q = []; self.done = 0
    def issue(self, text, tag):
        self.p(text); self.q.append(tag)
    def wait(self, tags):
        tags = set(tags)
        last = -1
        for i, t in enumerate(self.q):
            if t in tags: last = i
        if last < self.done: return
        n = len(self.q) - 1 - last
        assert n <= 63, n
        self.p("s_waitcnt vmcnt(%d)" % n)
        self.done = last + 1
    def outstanding(self): return len(self.q) - self.done

def xcd_map_rb_c(p):
    p("s_and_b32 s24, s2, 7\ns_lshr_b32 s25, s2, 3")
    p("s_lshr_b32 s21, s24, 1\ns_lshl_b32 s21, s21, 2\ns_and_b32 s26, s25, 3\ns_add_u32 s21, s21, s26")
    p("s_and_b32 s22, s24, 1\ns_lshl_b32 s22, s22, 3\ns_lshr_b32 s26, s25, 2\ns_add_u32 s22, s22, s26")
    p("s_lshl_b32 s23, s21, 2\ns_add_u32 s23, s23, s20")

def stats_loads(p, vm, ST, sreg_tt='s23', vt='v16'):
    p("v_and_b32 v4, 31, v1\nv_lshrrev_b32 v5, 5, v1")
    p("v_lshlrev_b32 v6, 4, v4")
    p("v_lshl_add_u32 v6, v5, 17, v6")
    p("s_lshl_b32 s27, %s, 9\ns_add_u32 s27, s27, %d" % (sreg_tt, ST))
    for m in range(4):
        vm.issue("buffer_load_dwordx4 v[%d:%d], v6, s[8:11], s27 offen" % (16+4*m, 19+4*m), 'stats')
        if m < 3: p("s_add_u32 s27, s27, 32768")

def stats_compute(p):
    p("v_add_f32 v16, v16, v18\nv_add_f32 v17, v17, v19")
    p("v_add_f32 v20, v20, v22\nv_add_f32 v21, v21, v23")
    p("v_add_f32 v24, v24, v26\nv_add_f32 v25, v25, v27")
    p("v_add_f32 v28, v28, v30\nv_add_f32 v29, v29, v31")
    p("v_add_f32 v16, v16, v20\nv_add_f32 v17, v17, v21")
    p("v_add_f32 v24, v24, v28\nv_add_f32 v25, v25, v29")
    p("v_add_f32 v16, v16, v24\nv_add_f32 v17, v17, v25")
    p("v_mov_b32 v18, v16\nv_mov_b32 v19, v17")
    p("v_permlane32_swap_b32 v16, v18\nv_permlane32_swap_b32 v17, v19")
    p("v_add_f32 v16, v16, v18\nv_add_f32 v17, v17, v19")
    p("v_mul_f32 v16, 0x%x, v16" % fbits(1.0/512))
    p("v_mul_f32 v17, 0x%x, v17" % fbits(1.0/512))
    p("v_fma_f32 v17, -v16, v16, v17")
    p("v_max_f32 v17, 0, v17")
    p("v_add_f32 v17, 0x%x, v17" % fbits(1e-5))
    p("v_rsq_f32 v60, v17")
    p("v_sub_f32 v18, 0, v16")
    p("v_cvt_pk_bf16_f32 v56, v18, v18")
    p("v_and_b32 v19, 0xffff0000, v56")
    p("v_sub_f32 v19, v18, v19")
    p("v_cvt_pk_bf16_f32 v57, v19, v19")
    p("v_mul_f32 v61, v17, v60")
    p("v_cmp_gt_u32 vcc, 32, v1")
    p("v_mov_b32 v58, 0\nv_mov_b32 v59, 0")
    p("v_cndmask_b32 v56, 0, v56, vcc\nv_cndmask_b32 v57, 0, v57, vcc")

def aug_A(p, src, dst):
    p("v_add_f32 v%d, v%d, v%d\nv_add_f32 v%d, v%d, v%d" % (src, src, src+1, src+2, src+2, src+3))
    p("v_add_f32 v%d, v%d, v%d" % (src, src, src+2))
    p("v_cvt_pk_bf16_f32 v%d, v%d, v%d" % (src+1, src, src))
    p("v_and_b32 v%d, 0xffff0000, v%d" % (src+1, src+1))
    p("v_sub_f32 v%d, v%d, v%d" % (src+2, src, src+1))
    p("v_cvt_pk_bf16_f32 v%d, v%d, v%d" % (dst, src+1, src+2))
    p("v_mov_b32 v%d, v%d\nv_mov_b32 v%d, 0\nv_mov_b32 v%d, 0" % (dst+1, dst, dst+2, dst+3))

def xr_main(p, vm, units, CH, RC, PRE, issue_chunk, fillers, ACC, WF, NWF, D, ldsaddr, xreg):
    n = len(units)
    nch = n // CH
    xw = set()
    def rd(u):
        base, off = ldsaddr(u)
        r = WF + 4*(u % NWF)
        p("ds_read_b128 v[%d:%d], %s offset:%d" % (r, r+3, base, off))
    def bar(q):
        vm.wait([('W', q)])
        p("s_barrier")
    bar(0)
    for u in range(min(D, n)): rd(u)
    pend = []
    for s in range(n):
        q = s // CH
        if s % CH == 0 and q + PRE < nch:
            pend += issue_chunk(q + PRE)
        pend += fillers.get(s, [])
        a, g = units[s]
        if g not in xw:
            vm.wait([('X', g)]); xw.add(g)
        nout = min(s + D, n) - s
        p("s_waitcnt lgkmcnt(%d)" % (nout - 1))
        r = WF + 4*(s % NWF)
        p("v_mfma_f32_32x32x16_bf16 v[%d:%d], v[%d:%d], %s, v[%d:%d]" % (ACC+16*a, ACC+16*a+15, r, r+3, xreg(g), ACC+16*a, ACC+16*a+15))
        nxt = s + D
        if nxt < n:
            if nxt % CH == 0: bar(nxt // CH)
            rd(nxt)
        left = CH - (s % CH)
        k = -(-len(pend) // left) if pend else 0
        k = min(k, 6) if s < n-1 else len(pend)
        for _ in range(k):
            f = pend.pop(0)
            if callable(f): f()
            else: p(f)
    for f in pend:
        if callable(f): f()
        else: p(f)

def gen_a1(name="a1_kernel"):
    p = Prog(name); vm = VM(p)
    prologue(p, 256)
    xcd_map_rb_c(p)
    p("v_lshlrev_b32 v3, 4, v1")
    stats_loads(p, vm, STA)
    p("v_lshlrev_b32 v7, 4, v4")
    p("s_mul_i32 s28, s22, 1536\ns_add_u32 s28, s28, %d" % CSP_QKV)
    for i in range(3):
        vm.issue("buffer_load_dwordx4 v[%d:%d], v7, s[8:11], s28 offen offset:%d" % (32+4*i, 35+4*i, 512*i), 'csp')
    p("s_mul_i32 s30, s22, 98304\ns_mul_i32 s31, s20, 3072\ns_add_u32 s30, s30, s31\ns_add_u32 s30, s30, %d" % WQKV_F)
    p("s_lshl_b32 s32, s23, 15\ns_add_u32 s32, s32, %d" % XFA)
    def issue_chunk(q):
        L = []
        L.append("s_add_u32 m0, s31, %d" % (q*12288))
        for j in range(3):
            L.append(lambda j=j, q=q: vm.issue("buffer_load_dwordx4 v3, s[8:11], s30 offen offset:%d lds" % (1024*j), ('W', q)))
        L.append("s_add_u32 s30, s30, 12288")
        for j in range(4):
            g = 4*q + j
            L.append(lambda j=j, g=g: vm.issue("buffer_load_dwordx4 a[%d:%d], v3, s[8:11], s32 offen offset:%d" % (4*g, 4*g+3, 1024*j), ('X', g)))
        L.append("s_add_u32 s32, s32, 4096")
        return L
    for q in range(8):
        for f in issue_chunk(q):
            if callable(f): f()
            else: p(f)
    p("v_add_u32 v8, 49152, v3")
    vm.wait(['stats'])
    stats_compute(p)
    vm.wait(['csp'])
    for i in range(3): aug_A(p, 32+4*i, 44+4*i)
    ACC = 64
    for i in range(3):
        p("v_mfma_f32_32x32x16_bf16 v[%d:%d], v[%d:%d], v[56:59], 0" % (ACC+16*i, ACC+16*i+15, 44+4*i, 47+4*i))
    units = [(i, g) for g in range(32) for i in range(3)]
    def ldsaddr(u):
        o = u*1024
        return ('v3', o) if o < 49152 else ('v8', o-49152)
    xr_main(p, vm, units, 12, 8, 8, issue_chunk, {}, ACC, 112, 8, 6, ldsaddr, lambda g: "a[%d:%d]" % (4*g, 4*g+3))
    p("v_lshlrev_b32 v9, 5, v4\nv_lshl_add_u32 v9, v5, 4, v9")
    for i in range(3):
        p("s_mul_i32 s34, s22, 3\ns_add_u32 s34, s34, %d" % i)
        p("s_lshr_b32 s35, s34, 4\ns_and_b32 s36, s34, 15")
        p("s_lshl_b32 s37, s35, 21")
        p("s_lshl_b32 s36, s36, 17")
        p("s_add_u32 s37, s37, s36\ns_lshl_b32 s36, s23, 10\ns_add_u32 s37, s37, s36\ns_add_u32 s37, s37, %d" % QF)
        p("s_add_u32 s38, s37, 65536")
        p("s_cmp_eq_u32 s35, 0")
        p("s_cselect_b32 s39, 0x%x, 1.0" % fbits(0.25*LOG2E))
        p("v_mul_f32 v62, s39, v60")
        p("s_cmp_eq_u32 s35, 2")
        p("s_cselect_b64 s[40:41], -1, 0")
        p("v_cndmask_b32 v63, v3, v9, s[40:41]")
        A = ACC+16*i
        for r in range(16):
            p("v_mul_f32 v%d, v%d, v62" % (A+r, A+r))
        for r in range(8):
            p("v_cvt_pk_bf16_f32 v%d, v%d, v%d" % (112+8*i+r, A+2*r, A+2*r+1))
        vm.issue("buffer_store_dwordx4 v[%d:%d], v63, s[8:11], s37 offen" % (112+8*i, 115+8*i), 'st')
        vm.issue("buffer_store_dwordx4 v[%d:%d], v63, s[8:11], s38 offen" % (116+8*i, 119+8*i), 'st')
    return finish(p, 512, 256)

def gen_b1(name="b1_kernel"):
    p = Prog(name); vm = VM(p)
    prologue(p, 256)
    xcd_map_rb_c(p)
    p("v_lshlrev_b32 v3, 4, v1")
    stats_loads(p, vm, STB)
    p("v_lshlrev_b32 v7, 4, v4")
    p("s_mul_i32 s28, s22, %d\ns_add_u32 s28, s28, %d" % (7*512, CSP_GU))
    CS = 176
    for i in range(7):
        vm.issue("buffer_load_dwordx4 v[%d:%d], v7, s[8:11], s28 offen offset:%d" % (CS+4*i, CS+3+4*i, 512*i), 'csp')
    p("s_mul_i32 s30, s22, %d\ns_lshl_b32 s31, s20, 12\ns_add_u32 s30, s30, s31\ns_add_u32 s30, s30, %d" % (224*1024, WGU_F))
    p("s_lshl_b32 s32, s23, 15\ns_add_u32 s32, s32, %d" % XFB)
    RC = 10
    def issue_chunk(q):
        L = []
        L.append("s_add_u32 m0, s31, %d" % ((q % RC)*16384))
        for j in range(4):
            L.append(lambda j=j, q=q: vm.issue("buffer_load_dwordx4 v3, s[8:11], s30 offen offset:%d lds" % (1024*j), ('W', q)))
        L.append("s_add_u32 s30, s30, 16384")
        if q < 8:
            for j in range(4):
                g = 4*q + j
                L.append(lambda j=j, g=g: vm.issue("buffer_load_dwordx4 a[%d:%d], v3, s[8:11], s32 offen offset:%d" % (4*g, 4*g+3, 1024*j), ('X', g)))
            L.append("s_add_u32 s32, s32, 4096")
        return L
    PRE = 6
    for q in range(PRE):
        for f in issue_chunk(q):
            if callable(f): f()
            else: p(f)
    p("v_add_u32 v8, 49152, v3\nv_add_u32 v9, 0x%x, v3\nv_add_u32 v10, 0x%x, v3" % (2*49152, 3*49152))
    vm.wait(['stats'])
    stats_compute(p)
    p("v_mul_f32 v62, 0x%x, v60" % fbits(-LOG2E))
    vm.wait(['csp'])
    ACC = 64
    for i in range(7):
        aug_A(p, CS+4*i, 32+4*(i%4))
        p("v_mfma_f32_32x32x16_bf16 v[%d:%d], v[%d:%d], v[56:59], 0" % (ACC+16*i, ACC+16*i+15, 32+4*(i%4), 35+4*(i%4)))
    units = [(i, g) for g in range(32) for i in range(4)] + [(i, g) for i in range(4,7) for g in range(32)]
    def ldsaddr(u):
        slot = u % (RC*16)
        o = slot*1024
        b = o // 49152
        return (['v3','v8','v9','v10'][b], o - b*49152)
    p("s_mul_i32 s34, s23, 112\ns_mul_i32 s35, s22, 7\ns_add_u32 s34, s34, s35\ns_lshl_b32 s34, s34, 10\ns_add_u32 s34, s34, %d" % HF)
    p("s_add_u32 s35, s34, 4096")
    def epi(i):
        A = ACC+16*i
        T = 16 + 8*(i % 2)
        L = []
        for j in range(8):
            L.append("v_mul_f32 v%d, v%d, v62" % (T+j, A+j))
        for j in range(8):
            L.append("v_exp_f32 v%d, v%d" % (T+j, T+j))
        for j in range(8):
            L.append("v_fma_f32 v%d, v%d, v61, v61" % (T+j, T+j))
        for j in range(8):
            L.append("v_rcp_f32 v%d, v%d" % (T+j, T+j))
        for j in range(8):
            L.append("v_mul_f32 v%d, v%d, v%d" % (T+j, T+j, A+8+j))
        for j in range(4):
            L.append("v_cvt_pk_bf16_f32 v%d, v%d, v%d" % (A+j, T+2*j, T+2*j+1))
        sreg, off = ('s34', 1024*i) if i < 4 else ('s35', 1024*(i-4))
        L.append(lambda: vm.issue("buffer_store_dwordx4 v[%d:%d], v3, s[8:11], %s offen offset:%d" % (A, A+3, sreg, off), 'st'))
        return L
    fillers = {128+2: epi(0)+epi(1), 144: epi(2), 160+2: epi(3)+epi(4), 192+2: epi(5)}
    xr_main(p, vm, units, 16, RC, PRE, issue_chunk, fillers, ACC, 176, 8, 6, ldsaddr, lambda g: "a[%d:%d]" % (4*g, 4*g+3))
    for f in epi(6):
        if callable(f): f()
        else: p(f)
    return finish(p, 512, 256)

if __name__ == '__main__':
    for g in (gen_a1, gen_b1):
        t, e = g()
        print(e[:10])
        open('x.s','w').write('.amdgcn_target "amdgcn-amd-amdhsa--gfx950"\n' + t)
        import subprocess
        print(subprocess.run("clang -x assembler -target amdgcn-amd-amdhsa -mcpu=gfx950 -c x.s -o x.o", shell=True, capture_output=True, text=True).stderr[:3000])
```

```python
from asmgen import *
from layout import *

WS_SRD = 's[8:11]'

def fbits(x):
    import struct
    return struct.unpack('<I', struct.pack('<f', x))[0]

def prologue(p, nwg, need_ws=True, extra_loads=()):
    p("s_cmp_ge_u32 s2, %d" % nwg)
    p("s_cbranch_scc1 %s_END" % p.name)
    if need_ws:
        p("s_load_dwordx2 s[4:5], s[0:1], 72")
    for (reg, off) in extra_loads:
        p("s_load_dwordx2 s[%d:%d], s[0:1], %d" % (reg, reg+1, off))
    p("v_and_b32 v1, 63, v0")
    p("v_lshrrev_b32 v2, 6, v0")
    p("v_readfirstlane_b32 s20, v2")
    p("s_waitcnt lgkmcnt(0)")
    if need_ws:
        p("s_mov_b32 s8, s4\ns_mov_b32 s9, s5\ns_mov_b32 s10, %d\ns_mov_b32 s11, 0x00020000" % WS_USED)

def srd(p, s, base, size):
    p("s_mov_b32 s%d, s%d\ns_mov_b32 s%d, s%d\ns_mov_b32 s%d, %d\ns_mov_b32 s%d, 0x00020000" % (s, base, s+1, base+1, s+2, size, s+3))

def finish(p, vgpr, accum=None, sgpr=102):
    p.label(p.name + "_END")
    p("s_endpgm")
    errs = p.check_waits()
    txt = kernel_header(p.name) + p.finalize() + kernel_desc(p.name, vgpr, sgpr, accum)
    return txt, errs
```

```python
XFA   = 0x0000000
XFB   = 0x0200000
STA   = 0x0400000
STB   = 0x0440000
QF    = 0x0500000
KF    = 0x0700000
VF    = 0x0900000
OF    = 0x0B00000
HF    = 0x0D00000
WQKV_F= 0x1400000
WGU_F = 0x1580000
WO_F  = 0x1900000
WD_F  = 0x1980000
CSP_QKV = 0x1B40000
CSP_GU  = 0x1B48000
WS_USED = 0x1C00000
```

```python
import sys
from kcommon import *
import k_p0, k_xr, k_sk, k_att

HDR = open('interleave_layers__softmax_full_mha__glu_gated_glu__prompt.s.ref').read().split('; Override launch geometry')[0]

def build(path, seq=None):
    ks = {}
    lds = {'p0_kernel': 34816, 'a1_kernel': 98304, 'a2_kernel': k_att.LDS_ATT, 'a3_kernel': 65536, 'b1_kernel': 163840, 'b2a_kernel': 65536, 'b2b_kernel': 65536}
    grid = {'p0_kernel': k_p0.NWG_P0}
    block = {'a2_kernel': 512}
    gens = [k_p0.gen_p0, k_xr.gen_a1, k_att.gen_a2, k_sk.gen_a3, k_xr.gen_b1, k_sk.gen_b2a, k_sk.gen_b2b]
    body = ''
    for g in gens:
        t, e = g()
        if e: print("WAIT ERRORS", e[:10])
        body += t
    if seq is None:
        seq = ['p0','a1','a2','a3','b1','b2a','a1','a2','a3','b1','b2b']
    out = HDR
    for k in seq:
        n = k + '_kernel'
        out += "; @launch kernel=%s grid=(%d,1,1) block=(%d,1,1) lds=%d\n" % (n, grid.get(n, 256), block.get(n, 256), lds[n])
    out += '.amdgcn_target "amdgcn-amd-amdhsa--gfx950"\n' + body
    open(path, 'w').write(out)
if __name__ == '__main__':
    build(sys.argv[1] if len(sys.argv) > 1 else 'interleave_layers__softmax_full_mha__glu_gated_glu__prompt.s')
```

```python
from mcommon import *
from m_xr import b1_chunk_ops, b1_wbase, b1_pre_csp, b1_pre_aug

PART0 = 9216
QSTR = 9216
MAXL = PART0 + 8*QSTR
S = [64, 80, 96, 112]; O = [128, 144]; P = 160; Q = [168, 172]
def K(j): return "a[%d:%d]" % (4*j, 4*j+3)
def VTf(j, i): return "a[%d:%d]" % (64+8*j+4*i, 64+8*j+4*i+3)

def att_const_init(p):
    p("v_and_b32 v16, 27, v4\nv_cmp_eq_u32 vcc, 16, v16\nv_mov_b32 v17, 0x3f803f80\nv_cndmask_b32 v16, 0, v17, vcc")
    for r in range(64, 192): p("v_accvgpr_write_b32 a%d, v16" % r)

def a2_phase(p):
    vm = VM(p); N = p.name
    p("s_lshl_b32 s27, s25, 16\ns_add_u32 s27, s27, s7")
    p("s_lshl_b32 s28, s26, 13\ns_add_u32 s28, s28, s27\ns_add_u32 s28, s28, %d" % QF)
    p("s_add_u32 s50, s28, 7168")
    p("s_lshl_b32 s29, s20, 14\ns_add_u32 s29, s29, s27")
    p("s_add_u32 s30, s29, %d\ns_add_u32 s31, s29, %d" % (KF, VT))
    p("v_and_b32 v6, 15, v4\nv_lshlrev_b32 v6, 4, v6\nv_lshl_add_u32 v6, v5, 8, v6")
    p("s_mov_b32 s32, 0x0000ffff\ns_mov_b32 s33, 0x0000ffff")
    p("s_mul_i32 s34, s20, 2304\ns_add_u32 s34, s34, %d" % (PART0 - QSTR))
    p("v_add_u32 v8, s34, v3\nv_lshl_add_u32 v9, v1, 2, s34")
    p("s_lshl_b32 s40, s24, 16\ns_lshl_b32 s41, s20, 13\ns_add_u32 s40, s40, s41\ns_add_u32 s40, s40, %d\ns_add_u32 s41, s40, 32768" % WO_F)
    b1_wbase(p, 0, 's44', 's45')
    p("s_add_u32 s65, s64, %d" % (F_QKV*32768))
    spin_wait(p, vm, "v251", "s65")
    stamp(p, 'a2_wait')
    def ldK(j):
        vm.issue("buffer_load_dwordx4 %s, v3, s[8:11], s30 offen offset:%d sc1" % (K(j), 1024*(j % 4)), ('K', j))
        if j % 4 == 3 and j < 15: p("s_add_u32 s30, s30, 4096")
    def ldV(j):
        p("s_mov_b64 exec, s[32:33]")
        for i in range(2):
            vm.issue("buffer_load_dwordx4 %s, v6, s[8:11], s31 offen offset:%d sc1" % (VTf(j, i), 1024*(j % 4) + 512*i), ('V', j))
        p("s_mov_b64 exec, -1")
        if j % 4 == 3 and j < 15: p("s_add_u32 s31, s31, 4096")
    def ldQ(b):
        vm.issue("buffer_load_dwordx4 v[%d:%d], v3, s[8:11], s28 offen sc1" % (Q[b], Q[b]+3), ('Q', b))
        p("s_add_u32 s28, s28, 1024")
    def QK(n):
        s = S[n % 4]; b = (n >> 4) & 1
        p("v_mfma_f32_32x32x16_bf16 v[%d:%d], %s, v[%d:%d], 0" % (s, s+15, K(n & 15), Q[b], Q[b]+3))
    def PV(n, i):
        o = O[(n >> 4) & 1]
        c = "0" if ((n & 15) == 0 and i == 0) else "v[%d:%d]" % (o, o+15)
        p("v_mfma_f32_32x32x16_bf16 v[%d:%d], %s, v[%d:%d], %s" % (o, o+15, VTf(n & 15, i), P+4*i, P+4*i+3, c))
    def wrO(b, off):
        o = O[b]
        p("ds_write_b128 v8, v[%d:%d] offset:%d" % (o, o+3, off))
        p("ds_write_b128 v8, v[%d:%d] offset:%d" % (o+4, o+7, off+1024))
        p("ds_write_b32 v9, v%d offset:%d" % (o+8, off+2048))
    def tile(n, first=False, hooks=None):
        h = hooks or {}
        s = S[n % 4]; sp = S[(n-1) % 4]
        e = [0]; c = [0]
        def E(): p("v_exp_f32 v%d, v%d" % (s+e[0], s+e[0])); e[0] += 1
        def C():
            if not first: p("v_cvt_pk_bf16_f32 v%d, v%d, v%d" % (P+c[0], sp+2*c[0], sp+2*c[0]+1))
            c[0] += 1
        def H(k):
            if k in h: h[k]()
        for _ in range(4): E(); C()
        E(); H('preQ'); QK(n+1); H('postQ')
        for _ in range(4): E(); C()
        E(); H('preP')
        if not first: PV(n-1, 0)
        H('post0')
        E(); E(); E()
        if not first: PV(n-1, 1)
        H('post1')
        E(); E(); E()
        assert e[0] == 16 and c[0] == 8
        H('end')
    ldQ(0); ldK(0); ldK(1); ldK(2); ldV(0); ldK(3); ldV(1); ldK(4); ldV(2)
    p("s_mov_b32 s46, %d" % (FLAGS + F_P0B*32768))
    vm.wait([('Q', 0), ('K', 0)])
    QK(0)
    p("s_nop 7\ns_nop 3")
    wo_ops = []
    for g in range(8):
        for b in range(2):
            r = 192 + 8*g + 4*b
            wo_ops.append(lambda g=g, b=b, r=r: vm.issue("buffer_load_dwordx4 a[%d:%d], v3, s[8:11], s%d offen offset:%d sc1" % (r, r+3, 40+b, 1024*(g % 4)), 'WO'))
        if g == 3: wo_ops.append("s_add_u32 s40, s40, 4096"); wo_ops.append("s_add_u32 s41, s41, 4096")
    pre_ops = wo_ops[:]
    for q in range(4): pre_ops += b1_chunk_ops(vm, q, 's44', 's45')
    def check_p0b():
        L = p.newlabel('PB'); D = p.newlabel('PBD')
        vm.wait(['pb'])
        p("s_mov_b32 s62, %d" % OPT['SPIN'])
        p.label(L)
        p("v_xor_b32 v20, s6, v20\nv_xor_b32 v21, s6, v21\nv_xor_b32 v22, s6, v22\nv_xor_b32 v23, s6, v23")
        p("v_or3_b32 v20, v20, v21, v22\nv_or_b32 v20, v20, v23\nv_cmp_ne_u32 vcc, 0, v20")
        p("s_cbranch_vccz %s" % D)
        p("buffer_load_dwordx4 v[20:23], v3, s[8:11], s46 offen sc1\ns_waitcnt vmcnt(0)")
        p("s_sub_u32 s62, s62, 1\ns_cmp_lg_u32 s62, 0\ns_cbranch_scc1 %s" % L)
        p.label(D)
    for n in range(32):
        hk = {}
        if n < 16:
            def preQ(n=n):
                if n + 1 < 16: vm.wait([('K', n+1)])
                else: vm.wait([('Q', 1)])
            def preP(n=n):
                if n >= 1: vm.wait([('V', n-1)])
            def post0(n=n):
                if n + 5 < 16: ldK(n+5)
                if n == 0: ldQ(1)
                if n == 11: vm.issue("buffer_load_dwordx4 v[20:23], v3, s[8:11], s46 offen sc1", 'pb')
            def post1(n=n):
                if n + 3 < 16: ldV(n+3)
            hk = dict(preQ=preQ, preP=preP, post0=post0, post1=post1)
        else:
            def preP(n=n):
                if n == 16: vm.wait([('V', 15)])
            def postQ(n=n):
                if n == 16: ldQ(0)
                if n == 18: check_p0b()
            def take(k):
                for _ in range(k):
                    if pre_ops: run_fill(p, pre_ops.pop(0))
            def post0(n=n):
                if n == 17: wrO(0, QSTR)
                if n >= 19: take(2)
            def post1(n=n):
                if n >= 19: take(2)
            def preQ(n=n):
                if n == 31: vm.wait([('Q', 0)])
            hk = dict(preP=preP, postQ=postQ, post0=post0, post1=post1, preQ=preQ)
        tile(n, first=(n == 0), hooks=hk)
    while pre_ops: run_fill(p, pre_ops.pop(0))
    p("v_add_u32 v8, %d, v8\nv_add_u32 v9, %d, v9" % (2*QSTR, 2*QSTR))
    p("s_mov_b32 s35, 3")
    nq0 = vm.outstanding()
    lab = N + "_ATT"
    p.label(lab)
    for n in range(32):
        hk = {}
        if n == 0: hk['postQ'] = lambda: (p("buffer_load_dwordx4 v[%d:%d], v3, s[8:11], s28 offen sc1" % (Q[1], Q[1]+3)), p("s_add_u32 s28, s28, 1024\ns_min_u32 s28, s28, s50"))
        if n == 1: hk['post0'] = lambda: wrO(1, 0)
        if n == 15: hk['preQ'] = lambda: p("s_waitcnt vmcnt(0)")
        if n == 16: hk['postQ'] = lambda: (p("buffer_load_dwordx4 v[%d:%d], v3, s[8:11], s28 offen sc1" % (Q[0], Q[0]+3)), p("s_add_u32 s28, s28, 1024"))
        if n == 17: hk['post0'] = lambda: wrO(0, QSTR)
        if n == 31: hk['preQ'] = lambda: p("s_waitcnt vmcnt(0)")
        tile(n, hooks=hk)
    p("v_add_u32 v8, %d, v8\nv_add_u32 v9, %d, v9" % (2*QSTR, 2*QSTR))
    p("s_sub_u32 s35, s35, 1\ns_cmp_lg_u32 s35, 0\ns_cbranch_scc1 %s" % lab)
    vm.done = len(vm.q)
    sp = S[3]
    for c in range(8): p("v_cvt_pk_bf16_f32 v%d, v%d, v%d" % (P+c, sp+2*c, sp+2*c+1))
    PV(31, 0); PV(31, 1)
    p("s_nop 7\ns_nop 7")
    wrO(1, 0)
    stamp(p, 'a2_mm')
    p("s_mov_b32 s47, 0")
    p.label(N + "_RED")
    p("s_waitcnt lgkmcnt(0)\ns_barrier")
    p("s_mul_i32 s34, s20, %d\ns_add_u32 s34, s34, %d" % (2*QSTR, PART0))
    p("v_add_u32 v10, s34, v3\nv_lshl_add_u32 v11, v1, 2, s34")
    R = 64
    for k in range(2):
        for src in range(4):
            b = R + 48*k + 12*src
            off = k*QSTR + src*2304
            p("ds_read_b128 v[%d:%d], v10 offset:%d" % (b, b+3, off))
            p("ds_read_b128 v[%d:%d], v10 offset:%d" % (b+4, b+7, off+1024))
            p("ds_read_b32 v%d, v11 offset:%d" % (b+8, off+2048))
    p("s_mov_b32 s36, 0x%x\ns_mov_b32 s37, 0x%x" % (fbits(2.0**-60), fbits(2.0**60)))
    p("s_lshl_b32 s38, s26, 3\ns_lshl_b32 s39, s20, 1\ns_add_u32 s38, s38, s39\ns_lshl_b32 s38, s38, 5\ns_add_u32 s38, s38, s25\ns_lshl_b32 s38, s38, 10\ns_add_u32 s38, s38, %d\ns_add_u32 s38, s38, s7" % OF)
    p("s_add_u32 s39, s38, 32768")
    p("s_mov_b64 s[48:49], -1")
    for k in range(2):
        p("s_waitcnt lgkmcnt(%d)" % (12 if k == 0 else 0))
        b = R + 48*k
        for r in range(0, 8, 2):
            p("v_pk_add_f32 v[%d:%d], v[%d:%d], v[%d:%d]" % (b+r, b+r+1, b+r, b+r+1, b+12+r, b+12+r+1))
            p("v_pk_add_f32 v[%d:%d], v[%d:%d], v[%d:%d]" % (b+24+r, b+24+r+1, b+24+r, b+24+r+1, b+36+r, b+36+r+1))
        p("v_add_f32 v%d, v%d, v%d\nv_add_f32 v%d, v%d, v%d" % (b+8, b+8, b+20, b+32, b+32, b+44))
        p("v_add_f32 v%d, v%d, v%d" % (b+8, b+8, b+32))
        for r in range(0, 8, 2):
            p("v_pk_add_f32 v[%d:%d], v[%d:%d], v[%d:%d]" % (b+r, b+r+1, b+r, b+r+1, b+24+r, b+24+r+1))
        p("v_cmp_le_f32 vcc, s36, v%d\ns_and_b64 s[48:49], s[48:49], vcc" % (b+8))
        p("v_cmp_ge_f32 vcc, s37, v%d\ns_and_b64 s[48:49], s[48:49], vcc" % (b+8))
        p("v_rcp_f32 v%d, v%d" % (b+10, b+8))
        for r in range(0, 8, 2):
            p("v_pk_mul_f32 v[%d:%d], v[%d:%d], v[%d:%d] op_sel_hi:[1,0]" % (b+r, b+r+1, b+r, b+r+1, b+10, b+11))
        for j in range(4): p("v_cvt_pk_bf16_f32 v%d, v%d, v%d" % (24+4*k+j, b+2*j, b+2*j+1))
        vm.issue("buffer_store_dwordx4 v[%d:%d], v3, s[8:11], s%d offen sc1" % (24+4*k, 27+4*k, 38+k), 'st')
    p("s_cmp_eq_u64 s[48:49], -1\ns_cselect_b32 s36, 0, 1")
    p("v_mov_b32 v16, s36\ns_lshl_b32 s37, s20, 2\nv_mov_b32 v17, s37")
    p("ds_write_b32 v17, v16\ns_waitcnt lgkmcnt(0)\ns_barrier")
    p("v_mov_b32 v17, 0\nds_read_b128 v[16:19], v17\ns_waitcnt lgkmcnt(0)")
    p("v_or3_b32 v16, v16, v17, v18\nv_or_b32 v16, v16, v19\nv_readfirstlane_b32 s36, v16")
    p("s_andn2_b32 s36, s36, s47")
    p("s_cmp_lg_u32 s36, 0\ns_cbranch_scc1 %s_SLOW" % N)
    p("s_add_u32 s65, s64, %d" % (F_O*32768))
    publish(p, vm, "s65")
    stamp(p, 'a2_pub')
    for q in (4, 5):
        for f in b1_chunk_ops(vm, q, 's44', 's45'): run_fill(p, f)
    b1_pre_csp(p, vm)
    b1_pre_aug(p, vm)

def a2_slow(p):
    N = p.name
    p.label(N + "_SLOW")
    p("s_waitcnt vmcnt(0)")
    p("s_barrier")
    p("s_lshl_b32 s27, s25, 16\ns_add_u32 s27, s27, s7\ns_lshl_b32 s28, s26, 13\ns_add_u32 s28, s28, s27\ns_add_u32 s28, s28, %d" % QF)
    p("s_mov_b32 s35, 8\ns_mov_b32 s36, s28")
    p("s_lshl_b32 s34, s20, 8\ns_add_u32 s34, s34, %d\nv_lshl_add_u32 v10, v1, 2, s34" % MAXL)
    p.label(N + "_SL1")
    p("buffer_load_dwordx4 v[168:171], v3, s[8:11], s36 offen sc1\ns_waitcnt vmcnt(0)")
    p("v_mov_b32 v24, 0xff800000")
    for j in range(16):
        p("v_mfma_f32_32x32x16_bf16 v[64:79], %s, v[168:171], 0" % K(j))
        for r in range(0, 16, 2): p("v_max3_f32 v24, v24, v%d, v%d" % (64+r, 65+r))
    p("v_mov_b32 v25, v24\nv_permlane32_swap_b32 v24, v25\nv_max_f32 v24, v24, v25")
    p("ds_write_b32 v10, v24\nv_add_u32 v10, 1024, v10\ns_add_u32 s36, s36, 1024")
    p("s_sub_u32 s35, s35, 1\ns_cmp_lg_u32 s35, 0\ns_cbranch_scc1 %s_SL1" % N)
    p("s_waitcnt lgkmcnt(0)\ns_barrier")
    p("s_mov_b32 s35, 8\ns_mov_b32 s36, s28")
    p("v_lshlrev_b32 v10, 2, v1\nv_add_u32 v10, %d, v10" % MAXL)
    p("s_mul_i32 s34, s20, 2304\ns_add_u32 s34, s34, %d\nv_add_u32 v8, s34, v3\nv_lshl_add_u32 v9, v1, 2, s34" % PART0)
    p.label(N + "_SL2")
    p("buffer_load_dwordx4 v[168:171], v3, s[8:11], s36 offen sc1")
    for w in range(4): p("ds_read_b32 v%d, v10 offset:%d" % (24+w, 256*w))
    p("s_waitcnt vmcnt(0) lgkmcnt(0)")
    p("v_max3_f32 v24, v24, v25, v26\nv_max_f32 v24, v24, v27")
    for r in range(16): p("v_sub_f32 v%d, 0, v24" % (80+r))
    for j in range(16):
        p("v_mfma_f32_32x32x16_bf16 v[64:79], %s, v[168:171], v[80:95]" % K(j))
        for r in range(16): p("v_exp_f32 v%d, v%d" % (64+r, 64+r))
        for c in range(8): p("v_cvt_pk_bf16_f32 v%d, v%d, v%d" % (P+c, 64+2*c, 65+2*c))
        p("v_mfma_f32_32x32x16_bf16 v[128:143], %s, v[160:163], %s" % (VTf(j, 0), "0" if j == 0 else "v[128:143]"))
        p("v_mfma_f32_32x32x16_bf16 v[128:143], %s, v[164:167], v[128:143]" % VTf(j, 1))
    p("s_nop 7\ns_nop 7")
    p("ds_write_b128 v8, v[128:131]\nds_write_b128 v8, v[132:135] offset:1024\nds_write_b32 v9, v136 offset:2048")
    p("v_add_u32 v8, %d, v8\nv_add_u32 v9, %d, v9\nv_add_u32 v10, 1024, v10\ns_add_u32 s36, s36, 1024" % (QSTR, QSTR))
    p("s_sub_u32 s35, s35, 1\ns_cmp_lg_u32 s35, 0\ns_cbranch_scc1 %s_SL2" % N)
    p("s_mov_b32 s47, 1")
    p("s_branch %s_RED" % N)
```

```python
from mcommon import *

def setup_ids(p):
    p("s_and_b32 s27, s2, 7\ns_lshr_b32 s28, s2, 3")
    p("s_lshr_b32 s29, s27, 1\ns_and_b32 s30, s27, 1")
    p("s_lshl_b32 s21, s29, 2\ns_and_b32 s31, s28, 3\ns_add_u32 s21, s21, s31")
    p("s_lshl_b32 s22, s30, 3\ns_lshr_b32 s31, s28, 2\ns_add_u32 s22, s22, s31")
    p("s_lshl_b32 s23, s29, 3\ns_and_b32 s31, s28, 7\ns_add_u32 s23, s23, s31")
    p("s_lshl_b32 s24, s30, 2\ns_lshr_b32 s31, s28, 3\ns_add_u32 s24, s24, s31")
    p("s_lshl_b32 s25, s27, 2\ns_lshr_b32 s31, s28, 3\ns_add_u32 s25, s25, s31")
    p("s_and_b32 s26, s28, 7")
    p("v_lshlrev_b32 v3, 4, v1\nv_and_b32 v4, 31, v1\nv_lshrrev_b32 v5, 5, v1")
    p("s_lshl_b32 s27, s21, 1\ns_lshr_b32 s28, s20, 1\ns_add_u32 s27, s27, s28")
    p("s_lshr_b32 s28, s27, 3\ns_lshl_b32 s28, s28, 1\ns_and_b32 s29, s27, 7\ns_lshl_b32 s29, s29, 3\ns_add_u32 s28, s28, s29")
    p("s_lshl_b32 s28, s28, 7\ns_and_b32 s29, s20, 1\ns_lshl_b32 s29, s29, 3\ns_add_u32 s28, s28, s29")
    p("v_bfe_u32 v6, v1, 3, 1\nv_bfe_u32 v7, v1, 1, 2\nv_lshl_add_u32 v6, v7, 6, v6")
    p("v_lshlrev_b32 v6, 7, v6\nv_and_b32 v7, 1, v1\nv_lshl_add_u32 v6, v7, 2, v6\nv_add_u32 v250, s28, v6")
    p("s_lshr_b32 s27, s25, 1\ns_lshr_b32 s28, s27, 3\ns_and_b32 s29, s27, 7\ns_lshl_b32 s29, s29, 5\ns_add_u32 s28, s28, s29")
    p("s_lshl_b32 s29, s20, 1\ns_add_u32 s29, s29, s28")
    p("s_lshr_b32 s30, s26, 1\ns_lshl_b32 s30, s30, 1\ns_and_b32 s31, s26, 1\ns_lshl_b32 s31, s31, 4\ns_add_u32 s30, s30, s31\ns_add_u32 s30, s30, s28")
    p("v_bfe_u32 v6, v1, 2, 2\nv_lshl_add_u32 v6, v6, 3, s29")
    p("v_bfe_u32 v7, v1, 2, 1\nv_lshl_add_u32 v7, v7, 3, s30")
    p("v_cmp_gt_u32 vcc, 16, v1\nv_cndmask_b32 v6, v7, v6, vcc")
    p("v_lshlrev_b32 v6, 7, v6\nv_and_b32 v7, 3, v1\nv_lshl_add_u32 v251, v7, 2, v6")
    p("s_lshr_b32 s27, s23, 2\ns_lshl_b32 s27, s27, 3\ns_lshl_b32 s28, s20, 1\ns_add_u32 s27, s27, s28\ns_lshl_b32 s27, s27, 7\ns_and_b32 s28, s23, 3\ns_lshl_b32 s28, s28, 2\ns_add_u32 s27, s27, s28")
    p("v_bfe_u32 v6, v1, 2, 1\nv_and_b32 v7, 3, v1\nv_lshl_add_u32 v6, v7, 6, v6\nv_lshlrev_b32 v6, 7, v6\nv_add_u32 v252, s27, v6")
    p("s_lshr_b32 s27, s23, 1\ns_lshr_b32 s28, s27, 2\ns_lshl_b32 s28, s28, 1\ns_and_b32 s29, s27, 3\ns_lshl_b32 s29, s29, 3\ns_add_u32 s28, s28, s29")
    p("s_lshr_b32 s29, s20, 1\ns_add_u32 s28, s28, s29\ns_and_b32 s29, s20, 1\ns_lshl_b32 s29, s29, 7\ns_add_u32 s28, s28, s29")
    p("s_lshl_b32 s28, s28, 7\ns_and_b32 s29, s23, 1\ns_lshl_b32 s29, s29, 3\ns_add_u32 s28, s28, s29")
    p("v_bfe_u32 v6, v1, 1, 2\nv_lshlrev_b32 v6, 12, v6\nv_and_b32 v7, 1, v1\nv_lshl_add_u32 v6, v7, 2, v6\nv_add_u32 v253, s28, v6")

def tile_ids(p):
    p("s_lshr_b32 s33, s20, 1\ns_lshl_b32 s34, s23, 1\ns_add_u32 s33, s33, s34")
    p("s_and_b32 s34, s20, 1\ns_lshl_b32 s35, s24, 1\ns_add_u32 s34, s34, s35")
    p("s_lshl_b32 s35, s33, 5\ns_lshl_b32 s36, s34, 1\ns_add_u32 s35, s35, s36\ns_lshl_b32 s35, s35, 10")

def tile_out(p, vm, base_sreg, XOFF, STOFF):
    p("s_add_u32 s36, s35, %d\ns_add_u32 s36, s36, %s" % (XOFF, base_sreg))
    vm.issue("buffer_store_dwordx4 v[16:19], v3, s[8:11], s36 offen sc1", 'st')
    vm.issue("buffer_store_dwordx4 v[20:23], v3, s[8:11], s36 offen offset:1024 sc1", 'st')
    p("s_mov_b32 s37, 0x3f803f80")
    p("v_mov_b32 v6, 0\nv_mov_b32 v7, 0")
    for j in range(8):
        p("v_dot2c_f32_bf16 v6, s37, v%d" % (16+j))
        p("v_dot2c_f32_bf16 v7, v%d, v%d" % (16+j, 16+j))
    p("v_permlane32_swap_b32 v6, v7")
    p("v_add_f32 v6, v6, v7")
    p("s_lshr_b32 s38, s34, 1\ns_lshl_b32 s38, s38, 15\ns_lshl_b32 s39, s33, 9\ns_add_u32 s38, s38, s39")
    p("s_and_b32 s39, s34, 1\ns_lshl_b32 s39, s39, 3\ns_add_u32 s38, s38, s39\ns_add_u32 s38, s38, %d\ns_add_u32 s38, s38, %s" % (STOFF, base_sreg))
    p("v_lshlrev_b32 v8, 4, v4\nv_lshl_add_u32 v8, v5, 2, v8")
    vm.issue("buffer_store_dword v6, v8, s[8:11], s38 offen sc1", 'st')

def srd(p, s, base, size):
    p("s_mov_b32 s%d, s%d\ns_mov_b32 s%d, s%d\ns_mov_b32 s%d, %d\ns_mov_b32 s%d, 0x00020000" % (s, base, s+1, base+1, s+2, size, s+3))

def lanecalc(p):
    p("v_lshrrev_b32 v10, 3, v1\nv_and_b32 v11, 7, v1\nv_mul_lo_u32 v10, v10, s44\nv_lshl_add_u32 v6, v11, 4, v10")
    p("s_lshl_b32 s50, s46, 7\ns_lshl_b32 s51, s20, 5\ns_add_u32 s50, s50, s51")
    p("s_mul_i32 s51, s50, s44\ns_lshl_b32 s52, s45, 7\ns_add_u32 s51, s51, s52\ns_lshl_b32 s53, s44, 3")
    p("v_bfe_u32 v12, v1, 2, 2\nv_lshl_add_u32 v12, v5, 2, v12\nv_lshlrev_b32 v12, 7, v12")
    p("v_and_b32 v9, 3, v1\nv_lshl_add_u32 v12, v9, 3, v12\nv_bfe_u32 v9, v1, 4, 1")

def plain_load(p, vm, srdreg):
    lanecalc(p)
    p("v_lshl_add_u32 v12, v9, 5, v12\ns_lshl_b32 s54, s20, 13\nv_add_u32 v12, s54, v12")
    for u in range(4):
        p("s_add_u32 m0, s54, %d" % (u*1024))
        vm.issue("buffer_load_dwordx4 v6, s[%d:%d], s51 offen lds" % (srdreg, srdreg+3), 'pl')
        if u < 3: p("s_add_u32 s51, s51, s53")

def plain_frags(p, vm):
    vm.wait(['pl'])
    for kg in range(2):
        for tau in range(2):
            b = 32 + 4*(2*kg+tau)
            p("ds_read_b64_tr_b16 v[%d:%d], v12 offset:%d" % (b, b+1, kg*2048 + tau*64))
            p("ds_read_b64_tr_b16 v[%d:%d], v12 offset:%d" % (b+2, b+3, kg*2048 + tau*64 + 1024))
    p("s_lshr_b32 s55, s50, 4")

def plain_store(p, vm):
    p("s_waitcnt lgkmcnt(0)")
    for kg in range(2):
        for tau in range(2):
            b = 32 + 4*(2*kg+tau)
            vm.issue("buffer_store_dwordx4 v[%d:%d], v3, s[8:11], s%d offen sc1" % (b, b+3, 56+tau), 'st')
        if kg == 0:
            p("s_add_u32 s56, s56, s58\ns_add_u32 s57, s57, s58")

def p0a(p):
    vm = VM(p); N = p.name
    p("s_load_dwordx2 s[12:13], s[0:1], 0\ns_load_dwordx2 s[16:17], s[0:1], 8\ns_load_dwordx2 s[28:29], s[0:1], 64")
    tile_ids(p)
    p("v_lshlrev_b32 v6, 10, v4\nv_lshl_add_u32 v6, v5, 4, v6")
    p("s_lshl_b32 s36, s33, 15\ns_lshl_b32 s37, s34, 6\ns_add_u32 s36, s36, s37")
    p("s_waitcnt lgkmcnt(0)")
    p("s_mov_b32 s14, %d\ns_mov_b32 s15, 0x00020000" % (2048*512*2))
    p("s_mov_b32 s18, %d\ns_mov_b32 s19, 0x00020000" % (512*3072))
    p("s_mov_b32 s30, 256\ns_mov_b32 s31, 0x00020000")
    vm.issue("buffer_load_dwordx4 v[16:19], v6, s[12:15], s36 offen", 'x')
    vm.issue("buffer_load_dwordx4 v[20:23], v6, s[12:15], s36 offen offset:32", 'x')
    p("s_or_b32 s37, s2, s20\ns_cmp_eq_u32 s37, 0\ns_cbranch_scc0 %s_NOTAG" % N)
    p("s_memrealtime s[38:39]\ns_waitcnt lgkmcnt(0)\ns_or_b32 s38, s38, 1")
    p("v_mov_b32 v8, s38\nv_mov_b32 v9, 0")
    p("s_mov_b64 exec, 1")
    p("buffer_store_dword v8, v9, s[28:31], 0 offen sc1")
    p("s_mov_b64 exec, -1")
    p.label(N + "_NOTAG")
    p("s_cmp_ge_u32 s2, 96\ns_cbranch_scc1 %s_NOQ1" % N)
    p("s_mul_i32 s46, s2, 171\ns_lshr_b32 s46, s46, 12\ns_mul_i32 s49, s46, 24\ns_sub_u32 s45, s2, s49\ns_mov_b32 s44, 3072")
    vq = VM(p)
    plain_load(p, vq, 16)
    p.label(N + "_NOQ1")
    p("s_waitcnt vmcnt(4)")
    p("s_cmp_ge_u32 s2, 96\ns_cbranch_scc0 %s_XW\ns_waitcnt vmcnt(0)" % N)
    p.label(N + "_XW")
    for b in (16, 20):
        p("v_permlane32_swap_b32 v%d, v%d\nv_permlane32_swap_b32 v%d, v%d" % (b, b+2, b+1, b+3))
    v2 = VM(p)
    tile_out(p, v2, "s7", XA, STA)
    L = p.newlabel('T'); D = p.newlabel('TD')
    p("s_mov_b32 s62, %d" % OPT['SPIN'])
    p("v_mov_b32 v9, 0")
    p.label(L)
    p("buffer_load_dword v8, v9, s[28:31], 0 offen sc1")
    p("s_waitcnt vmcnt(0)")
    p("v_readfirstlane_b32 s6, v8")
    p("s_cmp_lg_u32 s6, 0\ns_cbranch_scc1 %s" % D)
    p("s_sub_u32 s62, s62, 1\ns_cmp_lg_u32 s62, 0\ns_cbranch_scc1 %s" % L)
    p.label(D)
    publish(p, None, "s64")
    p("s_cmp_ge_u32 s2, 96\ns_cbranch_scc1 %s_NOQ2" % N)
    v3_ = VM(p); v3_.q = ['pl']; v3_.done = 1
    plain_frags(p, v3_)
    for tau in range(2):
        p("s_lshl_b32 s59, s45, 1\ns_add_u32 s59, s59, %d" % tau)
        p("s_and_b32 s60, s59, 15\ns_lshr_b32 s61, s59, 4")
        p("s_lshl_b32 s60, s60, 5\ns_add_u32 s60, s60, s55\ns_mul_i32 s60, s60, 3\ns_add_u32 s60, s60, s61")
        p("s_lshl_b32 s60, s60, 10\ns_add_u32 s%d, s60, %d" % (56+tau, WQKV_F))
    p("s_mov_b32 s58, 3072")
    plain_store(p, v3_)
    p("s_mov_b32 s37, 0x3f803f80")
    p("v_mov_b32 v10, 0\nv_mov_b32 v11, 0")
    for kg in range(2):
        for tau in range(2):
            b = 32 + 4*(2*kg+tau)
            for j in range(4):
                p("v_dot2c_f32_bf16 v%d, s37, v%d" % (10+tau, b+j))
    p("v_permlane32_swap_b32 v10, v11\nv_add_f32 v10, v10, v11")
    p("v_lshlrev_b32 v12, 2, v1\ns_lshl_b32 s59, s20, 8\nv_add_u32 v13, s59, v12")
    p("ds_write_b32 v13, v10 offset:36864\ns_waitcnt lgkmcnt(0)\ns_barrier")
    p("s_cmp_eq_u32 s20, 0\ns_cbranch_scc0 %s_Q3" % N)
    for w in range(4):
        p("ds_read_b32 v%d, v12 offset:%d" % (48+w, 36864+256*w))
    p("s_waitcnt lgkmcnt(0)")
    p("v_add_f32 v48, v48, v49\nv_add_f32 v50, v50, v51\nv_add_f32 v48, v48, v50")
    p("s_lshl_b32 s59, s45, 10\ns_lshl_b32 s60, s46, 2\ns_add_u32 s59, s59, s60\ns_add_u32 s59, s59, %d" % CSP_QKV)
    p("buffer_store_dword v48, v3, s[8:11], s59 offen sc1")
    p.label(N + "_Q3")
    publish(p, None, "%d" % (FLAGS + F_P0Q*32768))
    p.label(N + "_NOQ2")

def p0b(p):
    N = p.name; L = lambda x: N + "_B" + x
    vm = VM(p)
    p("s_load_dwordx2 s[12:13], s[0:1], 16\ns_load_dwordx2 s[16:17], s[0:1], 48\ns_load_dwordx2 s[28:29], s[0:1], 32\ns_load_dwordx2 s[40:41], s[0:1], 40")
    p("s_waitcnt lgkmcnt(0)")
    p("s_cmp_ge_u32 s2, 96\ns_cbranch_scc0 %s" % L("LO"))
    p("s_cmp_ge_u32 s2, 208\ns_cbranch_scc0 %s" % L("GU"))
    p("s_sub_u32 s48, s2, %d\ns_branch %s" % (208-64, L("WD")))
    p.label(L("LO"))
    p("s_cmp_ge_u32 s2, 32\ns_cbranch_scc0 %s" % L("WO"))
    p("s_sub_u32 s48, s2, 32")
    p.label(L("WD"))
    p("s_mov_b32 s12, s16\ns_mov_b32 s13, s17\ns_mov_b32 s14, %d\ns_mov_b32 s62, 112\ns_mov_b32 s63, %d" % (1792*1024, WD_F))
    p("s_branch %s" % L("PL"))
    p.label(L("WO"))
    p("s_mov_b32 s48, s2\ns_mov_b32 s14, %d\ns_mov_b32 s62, 32\ns_mov_b32 s63, %d" % (512*1024, WO_F))
    p.label(L("PL"))
    p("s_mov_b32 s15, 0x00020000\ns_and_b32 s45, s48, 7\ns_lshr_b32 s46, s48, 3\ns_mov_b32 s44, 1024")
    plain_load(p, vm, 12)
    plain_frags(p, vm)
    for tau in range(2):
        p("s_lshl_b32 s59, s45, 1\ns_add_u32 s59, s59, %d" % tau)
        p("s_mul_i32 s60, s59, s62\ns_add_u32 s60, s60, s55\ns_lshl_b32 s60, s60, 10\ns_add_u32 s%d, s60, s63" % (56+tau))
    p("s_mov_b32 s58, 1024")
    plain_store(p, vm)
    p("s_branch %s" % L("END"))
    p.label(L("GU"))
    vm = VM(p)
    p("s_sub_u32 s48, s2, 96")
    p("s_mul_i32 s46, s48, 147\ns_lshr_b32 s46, s46, 12\ns_mul_i32 s49, s46, 28\ns_sub_u32 s45, s48, s49")
    p("s_mov_b32 s30, %d\ns_mov_b32 s31, 0x00020000\ns_mov_b32 s44, 3584" % (512*3584))
    p("s_mov_b32 s42, %d\ns_mov_b32 s43, 0x00020000" % (512*3584))
    lanecalc(p)
    p("v_lshl_add_u32 v12, v9, 12, v12\ns_lshl_b32 s54, s20, 13\nv_add_u32 v12, s54, v12")
    for u in range(4):
        p("s_add_u32 m0, s54, %d" % (u*1024))
        vm.issue("buffer_load_dwordx4 v6, s[28:31], s51 offen lds", 'pl')
        p("s_add_u32 m0, s54, %d" % (4096+u*1024))
        vm.issue("buffer_load_dwordx4 v6, s[40:43], s51 offen lds", 'pl')
        if u < 3: p("s_add_u32 s51, s51, s53")
    p("s_lshr_b32 s55, s50, 4")
    for i in range(4):
        p("s_lshl_b32 s59, s45, 2\ns_add_u32 s59, s59, %d" % i)
        p("s_mul_i32 s60, s59, 147\ns_lshr_b32 s60, s60, 10\ns_mul_i32 s61, s60, 7\ns_sub_u32 s61, s59, s61")
        p("s_lshl_b32 s62, s55, 2\ns_add_u32 s62, s62, s61\ns_lshl_b32 s63, s61, 5\ns_add_u32 s63, s63, s55")
        p("s_cmp_lt_u32 s61, 4\ns_cselect_b32 s62, s62, s63\ns_movk_i32 s%d, 0x400\ns_cselect_b32 s%d, 4096, s%d" % (72+i, 72+i, 72+i))
        p("s_mul_i32 s60, s60, 224\ns_add_u32 s60, s60, s62\ns_lshl_b32 s60, s60, 10\ns_add_u32 s%d, s60, %d" % (68+i, WGU_F))
    vm.wait(['pl'])
    for kg in range(2):
        for i in range(4):
            b = 32 + 4*(4*kg+i)
            p("ds_read_b64_tr_b16 v[%d:%d], v12 offset:%d" % (b, b+1, kg*2048 + i*32))
            p("ds_read_b64_tr_b16 v[%d:%d], v12 offset:%d" % (b+2, b+3, kg*2048 + i*32 + 1024))
    p("s_waitcnt lgkmcnt(0)")
    for kg in range(2):
        for i in range(4):
            b = 32 + 4*(4*kg+i)
            vm.issue("buffer_store_dwordx4 v[%d:%d], v3, s[8:11], s%d offen sc1" % (b, b+3, 68+i), 'st')
            if kg == 0:
                p("s_add_u32 s%d, s%d, s%d" % (68+i, 68+i, 72+i))
    p("s_mov_b32 s37, 0x3f803f80")
    for i in range(4): p("v_mov_b32 v%d, 0" % (8+i))
    for kg in range(2):
        for i in range(4):
            b = 32 + 4*(4*kg+i)
            for j in range(4):
                p("v_dot2c_f32_bf16 v%d, s37, v%d" % (8+i, b+j))
    p("v_permlane32_swap_b32 v8, v9\nv_permlane32_swap_b32 v10, v11\nv_add_f32 v8, v8, v9\nv_add_f32 v10, v10, v11")
    p("v_lshlrev_b32 v14, 2, v1\ns_lshl_b32 s59, s20, 9\nv_add_u32 v15, s59, v14")
    p("ds_write_b32 v15, v8 offset:32768\nds_write_b32 v15, v10 offset:33024\ns_waitcnt lgkmcnt(0)\ns_barrier")
    p("s_cmp_lt_u32 s20, 2\ns_cbranch_scc0 %s" % L("END"))
    p("s_lshl_b32 s59, s20, 8\nv_add_u32 v15, s59, v14")
    for w in range(4):
        p("ds_read_b32 v%d, v15 offset:%d" % (16+w, 32768+512*w))
    p("s_waitcnt lgkmcnt(0)")
    p("v_add_f32 v16, v16, v17\nv_add_f32 v18, v18, v19\nv_add_f32 v16, v16, v18")
    p("s_lshl_b32 s59, s45, 11\ns_lshl_b32 s60, s20, 10\ns_add_u32 s59, s59, s60\ns_lshl_b32 s60, s46, 2\ns_add_u32 s59, s59, s60\ns_add_u32 s59, s59, %d" % CSP_GU)
    p("buffer_store_dword v16, v3, s[8:11], s59 offen sc1")
    p.label(L("END"))
    p("s_waitcnt vmcnt(0)")
    p("s_barrier")
    p("s_cmp_eq_u32 s20, 0\ns_cbranch_scc0 %s" % L("NF"))
    p("s_lshl_b32 s62, s2, 2\ns_add_u32 s62, s62, %d" % (FLAGS + F_P0B*32768))
    p("v_mov_b32 v16, s6\nv_mov_b32 v17, 0\ns_mov_b64 exec, 1")
    p("buffer_store_dword v16, v17, s[8:11], s62 offen sc1")
    p("s_mov_b64 exec, -1")
    p.label(L("NF"))
```

```python
from mcommon import *
from m_p0 import tile_ids, tile_out, srd
from m_xr import a1_pre

ACC = 64
def sk_reduce(p, vm):
    p("s_lshl_b32 s37, s20, 12\nv_add_u32 v6, s37, v3")
    for tau in range(4):
        for q in range(4):
            A = ACC + 16*tau + 4*q
            p("ds_write_b128 v6, v[%d:%d] offset:%d" % (A, A+3, tau*16384 + q*1024))
    p("s_lshl_b32 s37, s20, 14\nv_add_u32 v7, s37, v3")
    p("s_waitcnt lgkmcnt(0)\ns_barrier")
    R = 128
    for src in range(4):
        for q in range(4):
            p("ds_read_b128 v[%d:%d], v7 offset:%d" % (R+16*src+4*q, R+16*src+4*q+3, src*4096 + q*1024))
    vm.wait(['res'])
    for j in range(8):
        p("v_lshlrev_b32 v%d, 16, v%d" % (32+2*j, 8+j))
        p("v_and_b32 v%d, 0xffff0000, v%d" % (33+2*j, 8+j))
    p("s_waitcnt lgkmcnt(8)")
    for r in range(0, 16, 2): p("v_pk_add_f32 v[%d:%d], v[%d:%d], v[%d:%d]" % (R+r, R+r+1, R+r, R+r+1, R+16+r, R+17+r))
    for r in range(0, 16, 2): p("v_pk_add_f32 v[%d:%d], v[%d:%d], v[%d:%d]" % (R+r, R+r+1, R+r, R+r+1, 32+r, 33+r))
    p("s_waitcnt lgkmcnt(0)")
    for r in range(0, 16, 2): p("v_pk_add_f32 v[%d:%d], v[%d:%d], v[%d:%d]" % (R+32+r, R+33+r, R+32+r, R+33+r, R+48+r, R+49+r))
    for r in range(0, 16, 2): p("v_pk_add_f32 v[%d:%d], v[%d:%d], v[%d:%d]" % (R+r, R+r+1, R+r, R+r+1, R+32+r, R+33+r))
    for j in range(8): p("v_cvt_pk_bf16_f32 v%d, v%d, v%d" % (16+j, R+2*j, R+2*j+1))

def res_loads(p, vm, XOFF):
    tile_ids(p)
    p("s_add_u32 s36, s35, %d\ns_add_u32 s36, s36, s7" % XOFF)
    vm.issue("buffer_load_dwordx4 v[8:11], v3, s[8:11], s36 offen sc1", 'res')
    vm.issue("buffer_load_dwordx4 v[12:15], v3, s[8:11], s36 offen offset:1024 sc1", 'res')

def a3_phase(p):
    vm = VM(p)
    res_loads(p, vm, XA)
    p("s_lshl_b32 s28, s23, 16\ns_lshl_b32 s29, s20, 13\ns_add_u32 s28, s28, s29\ns_add_u32 s28, s28, %d\ns_add_u32 s28, s28, s7\ns_add_u32 s29, s28, 32768" % OF)
    p("s_add_u32 s65, s64, %d" % (F_O*32768))
    spin_wait(p, vm, "v252", "s65")
    stamp(p, 'a3_wait')
    for g in range(8):
        for a in range(2):
            r = 8*g + 4*a
            vm.issue("buffer_load_dwordx4 a[%d:%d], v3, s[8:11], s%d offen offset:%d sc1" % (r, r+3, 28+a, 1024*(g % 4)), ('X', g, a))
        if g == 3: p("s_add_u32 s28, s28, 4096\ns_add_u32 s29, s29, 4096")
    for g in range(8):
        for a in range(2):
            vm.wait([('X', g, a)])
            for b in range(2):
                A = ACC + 16*(2*a+b)
                c = "0" if g == 0 else "v[%d:%d]" % (A, A+15)
                p("v_mfma_f32_32x32x16_bf16 v[%d:%d], a[%d:%d], a[%d:%d], %s" % (A, A+15, 192+8*g+4*b, 195+8*g+4*b, 8*g+4*a, 8*g+4*a+3, c))
    stamp(p, 'a3_mm')
    sk_reduce(p, vm)
    tile_out(p, vm, "s7", XB, STB)
    p("s_add_u32 s65, s64, %d" % (F_XB*32768))
    publish(p, vm, "s65")
    stamp(p, 'a3_pub')

WT = 128
def b2_pre(p):
    vm = VM(p)
    for g in range(16, 28):
        for b in range(2):
            r = WT + 8*(g-16) + 4*b
            vm.issue("buffer_load_dwordx4 v[%d:%d], v3, s[8:11], s%d offen offset:%d sc1" % (r, r+3, 42+b, 1024*(g % 4)), 'WT')
        if g % 4 == 3 and g < 27: p("s_add_u32 s42, s42, 4096\ns_add_u32 s43, s43, 4096")

def b2_phase(p):
    vm = VM(p); N = p.name
    res_loads(p, vm, XB)
    p("s_mul_i32 s28, s23, %d\ns_mul_i32 s29, s20, %d\ns_add_u32 s28, s28, s29\ns_add_u32 s28, s28, %d\ns_add_u32 s28, s28, s7\ns_add_u32 s29, s28, %d" % (2*112*1024, 28*1024, HF, 112*1024))
    p("s_add_u32 s65, s64, %d" % (F_H*32768))
    spin_wait(p, vm, "v253", "s65")
    stamp(p, 'b2_wait')
    NG = 28; RD = 16
    def xl(g):
        for a in range(2):
            r = 8*(g % RD) + 4*a
            vm.issue("buffer_load_dwordx4 a[%d:%d], v3, s[8:11], s%d offen offset:%d sc1" % (r, r+3, 28+a, 1024*(g % 4)), ('X', g, a))
        if g % 4 == 3 and g < NG-1: p("s_add_u32 s28, s28, 4096\ns_add_u32 s29, s29, 4096")
    PRE = 6
    for g in range(PRE): xl(g)
    nxt = PRE
    for g in range(NG):
        for a in range(2):
            vm.wait([('X', g, a)])
            for b in range(2):
                A = ACC + 16*(2*a+b)
                c = "0" if g == 0 else "v[%d:%d]" % (A, A+15)
                w = ("a[%d:%d]" % (128+8*g+4*b, 131+8*g+4*b)) if g < 16 else ("v[%d:%d]" % (WT+8*(g-16)+4*b, WT+8*(g-16)+4*b+3))
                r = 8*(g % RD) + 4*a
                p("v_mfma_f32_32x32x16_bf16 v[%d:%d], %s, a[%d:%d], %s" % (A, A+15, w, r, r+3, c))
            if a == 0 and nxt < NG and nxt - RD < g:
                xl(nxt); nxt += 1
        if g < 4 and nxt < NG: xl(nxt); nxt += 1
    assert nxt == NG
    stamp(p, 'b2_mm')
    sk_reduce(p, vm)
    p("s_cmp_eq_u32 s3, 0\ns_cbranch_scc0 %s_FINAL" % N)
    p("s_add_u32 s40, s7, %d" % LS)
    tile_out(p, vm, "s40", XA, STA)
    p("s_add_u32 s65, s64, %d" % (5*32768))
    publish(p, vm, "s65")
    stamp(p, 'b2_pub')
    a1_pre(p)
    p("s_mov_b32 s3, 1\ns_add_u32 s7, s7, %d\ns_add_u32 s64, s64, %d" % (LS, 5*32768))
    p("s_branch %s_LAYER" % N)
    p.label(N + "_FINAL")
    p("s_load_dwordx2 s[12:13], s[0:1], 56")
    for i in range(2):
        p("v_permlane32_swap_b32 v%d, v%d" % (16+4*i, 18+4*i))
        p("v_permlane32_swap_b32 v%d, v%d" % (17+4*i, 19+4*i))
    p("v_lshlrev_b32 v6, 10, v4\nv_lshl_add_u32 v6, v5, 4, v6")
    p("s_lshl_b32 s38, s33, 15\ns_lshl_b32 s39, s34, 6\ns_add_u32 s38, s38, s39")
    p("s_waitcnt lgkmcnt(0)")
    p("s_mov_b32 s14, %d\ns_mov_b32 s15, 0x00020000" % (2048*512*2))
    p("buffer_store_dwordx4 v[16:19], v6, s[12:15], s38 offen")
    p("buffer_store_dwordx4 v[20:23], v6, s[12:15], s38 offen offset:32")
```

```python
from mcommon import *

def stats_loads(p, vm, ST):
    p("v_lshlrev_b32 v6, 4, v4\nv_lshl_add_u32 v6, v5, 17, v6")
    p("s_lshl_b32 s28, s27, 9\ns_add_u32 s28, s28, %d\ns_add_u32 s28, s28, s7" % ST)
    for m in range(4):
        vm.issue("buffer_load_dwordx4 v[%d:%d], v6, s[8:11], s28 offen sc1" % (16+4*m, 19+4*m), 'stats')
        if m < 3: p("s_add_u32 s28, s28, 32768")

def stats_compute(p):
    p("v_pk_add_f32 v[16:17], v[16:17], v[18:19]\nv_pk_add_f32 v[20:21], v[20:21], v[22:23]")
    p("v_pk_add_f32 v[24:25], v[24:25], v[26:27]\nv_pk_add_f32 v[28:29], v[28:29], v[30:31]")
    p("v_pk_add_f32 v[16:17], v[16:17], v[20:21]\nv_pk_add_f32 v[24:25], v[24:25], v[28:29]")
    p("v_pk_add_f32 v[16:17], v[16:17], v[24:25]")
    p("v_mov_b32 v18, v16\nv_mov_b32 v19, v17")
    p("v_permlane32_swap_b32 v16, v18\nv_permlane32_swap_b32 v17, v19")
    p("v_add_f32 v16, v16, v18\nv_add_f32 v17, v17, v19")
    p("v_mul_f32 v16, 0x%x, v16" % fbits(1.0/512))
    p("v_mul_f32 v17, 0x%x, v17" % fbits(1.0/512))
    p("v_fma_f32 v17, -v16, v16, v17")
    p("v_max_f32 v17, 0, v17")
    p("v_add_f32 v17, 0x%x, v17" % fbits(1e-5))
    p("v_rsq_f32 v60, v17")
    p("v_sub_f32 v18, 0, v16")
    p("v_cvt_pk_bf16_f32 v56, v18, v18")
    p("v_and_b32 v19, 0xffff0000, v56")
    p("v_sub_f32 v19, v18, v19")
    p("v_cvt_pk_bf16_f32 v57, v19, v19")
    p("v_mul_f32 v61, v17, v60")
    p("v_cmp_gt_u32 vcc, 32, v1")
    p("v_mov_b32 v58, 0\nv_mov_b32 v59, 0")
    p("v_cndmask_b32 v56, 0, v56, vcc\nv_cndmask_b32 v57, 0, v57, vcc")

def aug_A(p, src, dst):
    p("v_add_f32 v%d, v%d, v%d\nv_add_f32 v%d, v%d, v%d" % (src, src, src+1, src+2, src+2, src+3))
    p("v_add_f32 v%d, v%d, v%d" % (src, src, src+2))
    p("v_cvt_pk_bf16_f32 v%d, v%d, v%d" % (src+1, src, src))
    p("v_and_b32 v%d, 0xffff0000, v%d" % (src+1, src+1))
    p("v_sub_f32 v%d, v%d, v%d" % (src+2, src, src+1))
    p("v_cvt_pk_bf16_f32 v%d, v%d, v%d" % (dst, src+1, src+2))
    p("v_mov_b32 v%d, v%d\nv_mov_b32 v%d, 0\nv_mov_b32 v%d, 0" % (dst+1, dst, dst+2, dst+3))

AUG1 = 236
AUGB = 208

def a1_pre(p):
    vm = VM(p)
    p("v_lshlrev_b32 v7, 4, v4")
    p("s_lshl_b32 s28, s22, 9\ns_add_u32 s28, s28, %d" % CSP_QKV)
    for i in range(3):
        vm.issue("buffer_load_dwordx4 v[%d:%d], v7, s[8:11], s28 offen sc1" % (32+4*i, 35+4*i), 'csp')
        if i < 2: p("s_add_u32 s28, s28, 8192")
    p("s_mul_i32 s30, s22, 98304\ns_mul_i32 s31, s20, 24576\ns_add_u32 s30, s30, s31\ns_add_u32 s30, s30, %d" % WQKV_F)
    p("s_add_u32 s31, s31, 65536")
    for q in range(6):
        p("s_add_u32 m0, s31, %d" % (q*4096))
        for j in range(4):
            vm.issue("buffer_load_dwordx4 v3, s[8:11], s30 offen offset:%d sc1 lds" % (1024*j), 'W')
        if q < 5: p("s_add_u32 s30, s30, 4096")
    vm.wait(['csp'])
    for i in range(3): aug_A(p, 32+4*i, AUG1+4*i)

def a1_main(p):
    vm = VM(p)
    p("s_lshl_b32 s27, s21, 2\ns_add_u32 s27, s27, s20")
    spin_wait(p, vm, "v250", "s64")
    stamp(p, 'a1_wait')
    stats_loads(p, vm, STA)
    p("s_lshl_b32 s32, s27, 15\ns_add_u32 s32, s32, %d\ns_add_u32 s32, s32, s7" % XA)
    def xload(g):
        vm.issue("buffer_load_dwordx4 a[%d:%d], v3, s[8:11], s32 offen offset:%d sc1" % (4*g, 4*g+3, 1024*(g % 4)), ('X', g))
        if g % 4 == 3 and g < 31: p("s_add_u32 s32, s32, 4096")
    NX0 = 10
    for g in range(NX0): xload(g)
    p("v_add_u32 v8, 65536, v3\nv_add_u32 v9, 0x20000, v3")
    p("s_lshl_b32 s34, s22, 17\ns_lshl_b32 s35, s27, 10\ns_add_u32 s34, s34, s35\ns_add_u32 s34, s34, s7")
    p("s_add_u32 s35, s34, %d\ns_add_u32 s36, s35, 65536" % QF)
    p("s_add_u32 s37, s34, %d\ns_add_u32 s38, s37, 65536" % KF)
    p("s_add_u32 s39, s34, %d" % VT)
    p("v_bfe_u32 v10, v4, 4, 1\nv_lshlrev_b32 v10, 16, v10\nv_lshl_add_u32 v10, v5, 8, v10\nv_and_b32 v11, 15, v4\nv_lshl_add_u32 v10, v11, 4, v10")
    p("s_lshl_b32 s40, s20, 14")
    p("v_lshl_add_u32 v11, v4, 2, s40\nv_lshl_add_u32 v12, v5, 4, s40")
    vm.wait(['stats'])
    stats_compute(p)
    p("ds_write_b32 v11, v60")
    p("v_mul_f32 v62, 0x%x, v60" % fbits(0.25*LOG2E))
    p("s_barrier")
    ACC = 64; WF = 112; NWF = 8; D = 6
    p("v_mfma_f32_32x32x16_bf16 v[%d:%d], v[%d:%d], v[56:59], 0" % (ACC, ACC+15, AUG1, AUG1+3))
    p("v_mfma_f32_32x32x16_bf16 v[%d:%d], v[%d:%d], v[56:59], 0" % (ACC+16, ACC+31, AUG1+4, AUG1+7))
    p("v_mfma_f32_32x32x16_bf16 v[%d:%d], v[56:59], v[%d:%d], 0" % (ACC+32, ACC+47, AUG1+8, AUG1+11))
    p("s_waitcnt lgkmcnt(0)")
    for q in range(4): p("ds_read_b128 v[%d:%d], v12 offset:%d" % (144+4*q, 147+4*q, 32*q))
    n = 96
    def rd(u):
        o = u*1024
        base, off = ('v8', o) if o < 65536 else ('v9', o-65536)
        r = WF + 4*(u % NWF)
        p("ds_read_b128 v[%d:%d], %s offset:%d" % (r, r+3, base, off))
    for u in range(D): rd(u)
    stamp(p, 'a1_go')
    for s in range(n):
        g, i = s // 3, s % 3
        if i == 0: vm.wait([('X', g)])
        nout = min(s + D, n) - s
        p("s_waitcnt lgkmcnt(%d)" % (nout - 1))
        r = WF + 4*(s % NWF); A = ACC + 16*i
        x = "a[%d:%d]" % (4*g, 4*g+3); w = "v[%d:%d]" % (r, r+3)
        if i < 2: p("v_mfma_f32_32x32x16_bf16 v[%d:%d], %s, %s, v[%d:%d]" % (A, A+15, w, x, A, A+15))
        else:     p("v_mfma_f32_32x32x16_bf16 v[%d:%d], %s, %s, v[%d:%d]" % (A, A+15, x, w, A, A+15))
        if s + D < n: rd(s + D)
        if i == 1 and g + NX0 < 32: xload(g + NX0)
    p("s_barrier")
    stamp(p, 'a1_mm')
    for r in range(0, 16, 2): p("v_pk_mul_f32 v[%d:%d], v[%d:%d], v[62:63] op_sel_hi:[1,0]" % (ACC+r, ACC+r+1, ACC+r, ACC+r+1))
    for r in range(8): p("v_cvt_pk_bf16_f32 v%d, v%d, v%d" % (112+r, ACC+2*r, ACC+2*r+1))
    vm.issue("buffer_store_dwordx4 v[112:115], v3, s[8:11], s35 offen sc1", 'st')
    vm.issue("buffer_store_dwordx4 v[116:119], v3, s[8:11], s36 offen sc1", 'st')
    A = ACC + 16
    for r in range(0, 16, 2): p("v_pk_mul_f32 v[%d:%d], v[%d:%d], v[60:61] op_sel_hi:[1,0]" % (A+r, A+r+1, A+r, A+r+1))
    for r in range(8): p("v_cvt_pk_bf16_f32 v%d, v%d, v%d" % (120+r, A+2*r, A+2*r+1))
    vm.issue("buffer_store_dwordx4 v[120:123], v3, s[8:11], s37 offen sc1", 'st')
    vm.issue("buffer_store_dwordx4 v[124:127], v3, s[8:11], s38 offen sc1", 'st')
    A = ACC + 32
    for r in range(0, 16, 2): p("v_pk_mul_f32 v[%d:%d], v[%d:%d], v[%d:%d]" % (A+r, A+r+1, A+r, A+r+1, 144+r, 145+r))
    for r in range(8): p("v_cvt_pk_bf16_f32 v%d, v%d, v%d" % (128+r, A+2*r, A+2*r+1))
    vm.issue("buffer_store_dwordx4 v[128:131], v10, s[8:11], s39 offen sc1", 'st')
    vm.issue("buffer_store_dwordx4 v[132:135], v10, s[8:11], s39 offen offset:512 sc1", 'st')
    p("s_add_u32 s65, s64, %d" % (F_QKV*32768))
    publish(p, vm, "s65")
    stamp(p, 'a1_pub')

SLOTSEQ = [6, 7, 8, 9, 4, 5, 0, 1, 2, 3]
def b1_chunk_ops(vm, q, sw='s30', sm='s31'):
    L = ["s_add_u32 m0, %s, %d" % (sm, SLOTSEQ[q % 10]*16384)]
    for j in range(4):
        L.append(lambda j=j, q=q: vm.issue("buffer_load_dwordx4 v3, s[8:11], %s offen offset:%d sc1 lds" % (sw, 1024*j), ('W', q)))
    L.append("s_add_u32 %s, %s, 16384" % (sw, sw))
    return L
def b1_wbase(p, q0, sw='s30', sm='s31'):
    p("s_mul_i32 %s, s22, %d\ns_lshl_b32 %s, s20, 12\ns_add_u32 %s, %s, %s\ns_add_u32 %s, %s, %d" % (sw, 224*1024, sm, sw, sw, sm, sw, sw, WGU_F + q0*16384))

def b1_pre_csp(p, vm):
    p("v_lshlrev_b32 v7, 4, v4")
    p("s_mul_i32 s28, s22, %d\ns_add_u32 s28, s28, %d" % (7*512, CSP_GU))
    for i in range(7):
        vm.issue("buffer_load_dwordx4 v[%d:%d], v7, s[8:11], s28 offen offset:%d sc1" % (32+4*i, 35+4*i, 512*i), 'csp')
def b1_pre_aug(p, vm):
    vm.wait(['csp'])
    for i in range(7): aug_A(p, 32+4*i, AUGB+4*i)

def wd_prefetch_ops(vm):
    L = []
    for g in range(16):
        for b in range(2):
            r = 128 + 8*g + 4*b
            L.append(lambda g=g, b=b, r=r: vm.issue("buffer_load_dwordx4 a[%d:%d], v3, s[8:11], s%d offen offset:%d sc1" % (r, r+3, 42+b, 1024*(g % 4)), ('WD', g)))
        if g % 4 == 3: L.append("s_add_u32 s42, s42, 4096"); L.append("s_add_u32 s43, s43, 4096")
    return L
def wd_base(p):
    p("s_mul_i32 s42, s24, %d\ns_mul_i32 s43, s20, %d\ns_add_u32 s42, s42, s43\ns_add_u32 s42, s42, %d\ns_add_u32 s43, s42, %d" % (2*112*1024, 28*1024, WD_F, 112*1024))

def b1_main(p):
    vm = VM(p)
    p("s_lshl_b32 s27, s21, 2\ns_add_u32 s27, s27, s20")
    b1_wbase(p, 6)
    wd_base(p)
    p("s_add_u32 s65, s64, %d" % (F_XB*32768))
    spin_wait(p, vm, "v250", "s65")
    stamp(p, 'b1_wait')
    stats_loads(p, vm, STB)
    p("s_lshl_b32 s32, s27, 15\ns_add_u32 s32, s32, %d\ns_add_u32 s32, s32, s7" % XB)
    def xload(g):
        vm.issue("buffer_load_dwordx4 a[%d:%d], v3, s[8:11], s32 offen offset:%d sc1" % (4*g, 4*g+3, 1024*(g % 4)), ('X', g))
        if g % 4 == 3 and g < 31: p("s_add_u32 s32, s32, 4096")
    NX0 = 8
    for g in range(NX0): xload(g)
    p("v_add_u32 v8, 49152, v3\nv_add_u32 v9, 0x%x, v3\nv_add_u32 v10, 0x%x, v3" % (2*49152, 3*49152))
    p("s_mul_i32 s34, s27, 112\ns_mul_i32 s35, s22, 7\ns_add_u32 s34, s34, s35\ns_lshl_b32 s34, s34, 10\ns_add_u32 s34, s34, %d\ns_add_u32 s34, s34, s7" % HF)
    p("s_add_u32 s35, s34, 4096")
    vm.wait(['stats'])
    stats_compute(p)
    p("v_mul_f32 v62, 0x%x, v60" % fbits(-LOG2E))
    p("s_barrier")
    ACC = 64; WF = 176; NWF = 8; D = 6; CH = 16
    for i in range(7):
        p("v_mfma_f32_32x32x16_bf16 v[%d:%d], v[%d:%d], v[56:59], 0" % (ACC+16*i, ACC+16*i+15, AUGB+4*i, AUGB+3+4*i))
    units = [(i, g) for g in range(32) for i in range(4)] + [(i, g) for i in range(4, 7) for g in range(32)]
    n = len(units)
    def rd(u):
        o = SLOTSEQ[(u // CH) % 10]*16384 + (u % CH)*1024
        b = o // 49152
        r = WF + 4*(u % NWF)
        p("ds_read_b128 v[%d:%d], %s offset:%d" % (r, r+3, ['v3', 'v8', 'v9', 'v10'][b], o - b*49152))
    def epi(i):
        A = ACC+16*i
        T = 16 + 8*(i % 2)
        L = []
        for j in range(8): L.append("v_mul_f32 v%d, v%d, v62" % (T+j, A+j))
        for j in range(8): L.append("v_exp_f32 v%d, v%d" % (T+j, T+j))
        for j in range(8): L.append("v_fma_f32 v%d, v%d, v61, v61" % (T+j, T+j))
        for j in range(8): L.append("v_rcp_f32 v%d, v%d" % (T+j, T+j))
        for j in range(8): L.append("v_mul_f32 v%d, v%d, v%d" % (T+j, T+j, A+8+j))
        for j in range(4): L.append("v_cvt_pk_bf16_f32 v%d, v%d, v%d" % (A+j, T+2*j, T+2*j+1))
        sreg, off = ('s34', 1024*i) if i < 4 else ('s35', 1024*(i-4))
        L.append(lambda: vm.issue("buffer_store_dwordx4 v[%d:%d], v3, s[8:11], %s offen offset:%d sc1" % (A, A+3, sreg, off), 'st'))
        return L
    sched = {}
    def at(s, ops): sched.setdefault(s, []).extend(ops)
    for g in range(32 - NX0): at(4*g + 1, [lambda g=g: xload(g + NX0)])
    for q in range(6, 14): at(16*(q-6) + 2, b1_chunk_ops(vm, q))
    at(130, epi(0)); at(134, epi(1)); at(138, epi(2)); at(142, epi(3))
    at(162, epi(4)); at(194, epi(5))
    wdops = wd_prefetch_ops(vm)
    for k, o in enumerate(wdops): at(132 + (k*88)//len(wdops), [o])
    for u in range(D): rd(u)
    stamp(p, 'b1_go')
    pend = []; xw = set()
    for s in range(n):
        pend += sched.get(s, [])
        a, g = units[s]
        if g not in xw:
            vm.wait([('X', g)]); xw.add(g)
        nout = min(s + D, n) - s
        p("s_waitcnt lgkmcnt(%d)" % (nout - 1))
        r = WF + 4*(s % NWF); A = ACC + 16*a
        p("v_mfma_f32_32x32x16_bf16 v[%d:%d], v[%d:%d], a[%d:%d], v[%d:%d]" % (A, A+15, r, r+3, 4*g, 4*g+3, A, A+15))
        nxt = s + D
        if nxt < n:
            if nxt % CH == 0 and nxt // CH >= 6:
                vm.wait([('W', nxt // CH)]); p("s_barrier")
            rd(nxt)
        if s == 64: p("s_barrier")
        bud = 20
        while pend and (bud > 0 or s == n-1):
            f = pend.pop(0); bud -= fcost(f); run_fill(p, f)
    assert not pend
    stamp(p, 'b1_mm')
    for f in epi(6): run_fill(p, f)
    p("s_add_u32 s65, s64, %d" % (F_H*32768))
    publish(p, vm, "s65")
    stamp(p, 'b1_pub')
```

```python
from asmgen import *
from mlayout import *
import struct
def fbits(x): return struct.unpack('<I', struct.pack('<f', x))[0]
LOG2E = 1.4426950408889634
OPT = dict(INSTR=False, SPIN=20000, STOP=None)

class VM:
    def __init__(self, p):
        self.p = p; self.q = []; self.done = 0
    def issue(self, text, tag):
        self.p(text); self.q.append(tag)
    def wait(self, tags):
        tags = set(tags)
        last = -1
        for i, t in enumerate(self.q):
            if t in tags: last = i
        if last < self.done: return
        n = len(self.q) - 1 - last
        if n > 63:
            raise Exception("vmcnt overflow %d" % n)
        self.p("s_waitcnt vmcnt(%d)" % n)
        self.done = last + 1
    def wait_all(self):
        self.p("s_waitcnt vmcnt(0)"); self.done = len(self.q)
    def outstanding(self): return len(self.q) - self.done

_stamp_names = []
def stamp(p, name):
    if not OPT['INSTR']: return
    _stamp_names.append(name)
    p("s_memrealtime s[98:99]")
    p("s_waitcnt lgkmcnt(0)")
    idx = len(_stamp_names) - 1
    p("s_lshl_b32 s97, s3, 5\ns_add_u32 s97, s97, %d" % idx)
    p("s_mov_b32 m0, s97")
    p("v_writelane_b32 v249, s98, m0")

def spin_wait(p, vm, voff, soff, nreg=1, label=None):
    L = p.newlabel('W'); D = p.newlabel('WD')
    p("s_mov_b32 s62, %d" % OPT['SPIN'])
    p.label(L)
    if nreg == 1:
        p("buffer_load_dword v16, %s, s[8:11], %s offen sc1" % (voff, soff))
        p("s_waitcnt vmcnt(0)")
        p("v_cmp_ne_u32 vcc, s6, v16")
    else:
        p("buffer_load_dwordx4 v[16:19], %s, s[8:11], %s offen sc1" % (voff, soff))
        p("s_waitcnt vmcnt(0)")
        p("v_xor_b32 v16, s6, v16\nv_xor_b32 v17, s6, v17\nv_xor_b32 v18, s6, v18\nv_xor_b32 v19, s6, v19")
        p("v_or3_b32 v16, v16, v17, v18\nv_or_b32 v16, v16, v19")
        p("v_cmp_ne_u32 vcc, 0, v16")
    p("s_cbranch_vccz %s" % D)
    p("s_sub_u32 s62, s62, 1")
    p("s_cmp_lg_u32 s62, 0")
    p("s_cbranch_scc1 %s" % L)
    p.label(D)
    if vm is not None: vm.done = len(vm.q)

def publish(p, vm, fidx_sreg_expr, per_wave=True):
    p("s_waitcnt vmcnt(0)")
    if vm is not None: vm.done = len(vm.q)
    p("s_lshl_b32 s62, s2, 7\ns_lshl_b32 s63, s20, 2\ns_add_u32 s62, s62, s63\ns_add_u32 s62, s62, %s" % fidx_sreg_expr)
    p("v_mov_b32 v16, s6\nv_mov_b32 v17, 0")
    p("s_mov_b64 exec, 1")
    p("buffer_store_dword v16, v17, s[8:11], s62 offen sc1")
    p("s_mov_b64 exec, -1")
    if vm is not None: vm.q.append('flag')

def run_fill(p, f):
    if callable(f): f()
    else: p(f)

def fcost(f):
    if callable(f): return 6
    op = f.split()[0]
    if op in TRANS: return 8
    if op.startswith('s_'): return 4
    if op.startswith('v_pk_'): return 4
    if op.startswith('ds_') or op.startswith('buffer_'): return 6
    return 4
```

```python
LS   = 0x1400000
XA   = 0x000000
XB   = 0x200000
QF   = 0x400000
KF   = 0x600000
VT   = 0x800000
OF   = 0xA00000
STA  = 0xC00000
STB  = 0xC40000
HF   = 0xD00000
WQKV_F = 0x2800000
WGU_F  = 0x2980000
WO_F   = 0x2D00000
WD_F   = 0x2D80000
CSP_QKV = 0x2F40000
CSP_GU  = 0x2F48000
FLAGS  = 0x3000000
F_X, F_QKV, F_O, F_XB, F_H = 0, 1, 2, 3, 4
F_P0Q = 10
F_P0B = 11
WS_USED = 0x3080000
TIM = 0x3100000
```

```python
import sys
from mcommon import *
import mcommon
import m_p0, m_xr, m_att, m_sk

HDR = open('interleave_layers__softmax_full_mha__glu_gated_glu__prompt.s.ref').read().split('; Override launch geometry')[0]
NAME = "interleave_layers__softmax_full_mha__glu_gated_glu__prompt_kernel"
def build(path):
    p = Prog("mg"); N = p.name
    mcommon._stamp_names.clear()
    p("s_cmp_ge_u32 s2, 256\ns_cbranch_scc1 %s_END" % N)
    p("s_load_dwordx2 s[4:5], s[0:1], 72")
    p("v_and_b32 v1, 63, v0\nv_lshrrev_b32 v2, 6, v0\nv_readfirstlane_b32 s20, v2")
    p("s_mov_b32 s3, 0\ns_mov_b32 s7, 0\ns_mov_b32 s64, %d\ns_mov_b32 s6, 0" % FLAGS)
    if OPT['INSTR']: p("v_mov_b32 v249, 0")
    m_p0.setup_ids(p)
    p("s_waitcnt lgkmcnt(0)")
    p("s_mov_b32 s8, s4\ns_mov_b32 s9, s5\ns_mov_b32 s10, %d\ns_mov_b32 s11, 0x00020000" % (0x4000000 if OPT['INSTR'] else WS_USED))
    stamp(p, 'start')
    m_p0.p0a(p)
    stamp(p, 'p0a')
    p("v_lshrrev_b32 v6, 4, v1\nv_min_u32 v6, 2, v6\nv_lshlrev_b32 v6, 3, v6\nv_bfe_u32 v7, v1, 2, 2\nv_mul_u32_u24 v7, 24, v7\nv_add_u32 v6, v6, v7")
    p("s_lshr_b32 s27, s22, 1\nv_add_u32 v6, s27, v6\nv_lshlrev_b32 v6, 7, v6\nv_and_b32 v7, 3, v1\nv_lshl_add_u32 v6, v7, 2, v6")
    p("s_mov_b32 s65, %d" % (FLAGS + F_P0Q*32768))
    spin_wait(p, None, "v6", "s65")
    m_xr.a1_pre(p)
    p.label(N + "_LAYER")
    m_xr.a1_main(p)
    stop = OPT['STOP']
    m_att.att_const_init(p)
    p("s_cmp_eq_u32 s3, 0\ns_cbranch_scc0 %s_NOP0B" % N)
    m_p0.p0b(p)
    stamp(p, 'p0b')
    p.label(N + "_NOP0B")
    m_att.a2_phase(p)
    m_sk.a3_phase(p)
    m_xr.b1_main(p)
    m_sk.b2_pre(p)
    m_sk.b2_phase(p)
    if OPT['INSTR']:
        p("s_waitcnt vmcnt(0)")
        stamp(p, 'end')
        p("s_lshl_b32 s62, s2, 2\ns_add_u32 s62, s62, s20\ns_lshl_b32 s62, s62, 8\ns_add_u32 s62, s62, %d" % TIM)
        p("v_lshlrev_b32 v6, 2, v1")
        p("buffer_store_dword v249, v6, s[8:11], s62 offen")
    p.label(N + "_END")
    p("s_endpgm")
    m_att.a2_slow(p)
    p("s_endpgm")
    errs = p.check_waits()
    if errs: print("WAIT ERRORS", len(errs), errs[:8])
    body = kernel_header(NAME) + p.finalize() + kernel_desc(NAME, 512, 102, 256)
    out = HDR + ("; @launch kernel=%s grid=(256,1,1) block=(256,1,1) lds=163840\n" % NAME if OPT.get('LIST', 1) else "; @launch grid=(256,1,1) block=(256,1,1) lds=163840\n") + '.amdgcn_target "amdgcn-amd-amdhsa--gfx950"\n' + body
    open(path, 'w').write(out)
    import json
    if OPT['INSTR']: json.dump(mcommon._stamp_names, open('stamps.json', 'w'))
    print("nops inserted", p.nops, "instrs", sum(1 for x in p.items if not isinstance(x, tuple)))
if __name__ == '__main__':
    path = sys.argv[1] if len(sys.argv) > 1 else 'mega.s'
    for a in sys.argv[2:]:
        if a == 'instr': OPT['INSTR'] = True
        elif '=' in a:
            k, v = a.split('='); OPT[k] = int(v) if v.lstrip('-').isdigit() else v
    build(path)
```

```python
from mcommon import *
from m_xr import b1_chunk_ops, b1_wbase, b1_pre_csp, b1_pre_aug

PART0 = 9216
QSTR = 9216
MAXL = PART0 + 8*QSTR
S = [64, 80, 96, 112]; O = [128, 144]; P = 160; Q = [168, 172]
def K(j): return "a[%d:%d]" % (4*j, 4*j+3)
def VTf(j, i): return "a[%d:%d]" % (64+8*j+4*i, 64+8*j+4*i+3)

def att_const_init(p):
    p("v_and_b32 v16, 27, v4\nv_cmp_eq_u32 vcc, 16, v16\nv_mov_b32 v17, 0x3f803f80\nv_cndmask_b32 v16, 0, v17, vcc")
    for r in range(64, 192): p("v_accvgpr_write_b32 a%d, v16" % r)

def a2_phase(p):
    vm = VM(p); N = p.name
    p("s_lshl_b32 s27, s25, 16\ns_add_u32 s27, s27, s7")
    p("s_lshl_b32 s28, s26, 13\ns_add_u32 s28, s28, s27\ns_add_u32 s28, s28, %d" % QF)
    p("s_add_u32 s50, s28, 7168")
    p("s_lshl_b32 s29, s20, 14\ns_add_u32 s29, s29, s27")
    p("s_add_u32 s30, s29, %d\ns_add_u32 s31, s29, %d" % (KF, VT))
    p("v_and_b32 v6, 15, v4\nv_lshlrev_b32 v6, 4, v6\nv_lshl_add_u32 v6, v5, 8, v6")
    p("s_mov_b32 s32, 0x0000ffff\ns_mov_b32 s33, 0x0000ffff")
    p("s_mul_i32 s34, s20, 2304\ns_add_u32 s34, s34, %d" % (PART0 - QSTR))
    p("v_add_u32 v8, s34, v3\nv_lshl_add_u32 v9, v1, 2, s34")
    p("s_lshl_b32 s40, s24, 16\ns_lshl_b32 s41, s20, 13\ns_add_u32 s40, s40, s41\ns_add_u32 s40, s40, %d\ns_add_u32 s41, s40, 32768" % WO_F)
    b1_wbase(p, 0, 's44', 's45')
    p("s_add_u32 s65, s64, %d" % (F_QKV*32768))
    spin_wait(p, vm, "v251", "s65")
    stamp(p, 'a2_wait')
    def ldK(j):
        vm.issue("buffer_load_dwordx4 %s, v3, s[8:11], s30 offen offset:%d sc1" % (K(j), 1024*(j % 4)), ('K', j))
        if j % 4 == 3 and j < 15: p("s_add_u32 s30, s30, 4096")
    def ldV(j):
        p("s_mov_b64 exec, s[32:33]")
        for i in range(2):
            vm.issue("buffer_load_dwordx4 %s, v6, s[8:11], s31 offen offset:%d sc1" % (VTf(j, i), 1024*(j % 4) + 512*i), ('V', j))
        p("s_mov_b64 exec, -1")
        if j % 4 == 3 and j < 15: p("s_add_u32 s31, s31, 4096")
    def ldQ(b):
        vm.issue("buffer_load_dwordx4 v[%d:%d], v3, s[8:11], s28 offen sc1" % (Q[b], Q[b]+3), ('Q', b))
        p("s_add_u32 s28, s28, 1024")
    def QK(n):
        s = S[n % 4]; b = (n >> 4) & 1
        p("v_mfma_f32_32x32x16_bf16 v[%d:%d], %s, v[%d:%d], 0" % (s, s+15, K(n & 15), Q[b], Q[b]+3))
    def PV(n, i):
        o = O[(n >> 4) & 1]
        c = "0" if ((n & 15) == 0 and i == 0) else "v[%d:%d]" % (o, o+15)
        p("v_mfma_f32_32x32x16_bf16 v[%d:%d], %s, v[%d:%d], %s" % (o, o+15, VTf(n & 15, i), P+4*i, P+4*i+3, c))
    def wrO(b, off):
        o = O[b]
        p("ds_write_b128 v8, v[%d:%d] offset:%d" % (o, o+3, off))
        p("ds_write_b128 v8, v[%d:%d] offset:%d" % (o+4, o+7, off+1024))
        p("ds_write_b32 v9, v%d offset:%d" % (o+8, off+2048))
    def tile(n, first=False, hooks=None):
        h = hooks or {}
        s = S[n % 4]; sp = S[(n-1) % 4]
        e = [0]; c = [0]
        def E(): p("v_exp_f32 v%d, v%d" % (s+e[0], s+e[0])); e[0] += 1
        def C():
            if not first: p("v_cvt_pk_bf16_f32 v%d, v%d, v%d" % (P+c[0], sp+2*c[0], sp+2*c[0]+1))
            c[0] += 1
        def H(k):
            if k in h: h[k]()
        for tok in OPT.get('ATTORD', 'ECECECEC E Q ECECECEC E 0 EEE 1 EEE').replace(' ', ''):
            if tok == 'E': E()
            elif tok == 'C': C()
            elif tok == 'Q': H('preQ'); QK(n+1); H('postQ')
            elif tok == '0':
                H('preP')
                if not first: PV(n-1, 0)
                H('post0')
            elif tok == '1':
                if not first: PV(n-1, 1)
                H('post1')
        assert e[0] == 16 and c[0] == 8
        H('end')
    ldQ(0); ldK(0); ldK(1); ldK(2); ldV(0); ldK(3); ldV(1); ldK(4); ldV(2)
    p("s_mov_b32 s46, %d" % (FLAGS + F_P0B*32768))
    vm.wait([('Q', 0), ('K', 0)])
    QK(0)
    p("s_nop 7\ns_nop 3")
    wo_ops = []
    for g in range(8):
        for b in range(2):
            r = 192 + 8*g + 4*b
            wo_ops.append(lambda g=g, b=b, r=r: vm.issue("buffer_load_dwordx4 a[%d:%d], v3, s[8:11], s%d offen offset:%d sc1" % (r, r+3, 40+b, 1024*(g % 4)), 'WO'))
        if g == 3: wo_ops.append("s_add_u32 s40, s40, 4096"); wo_ops.append("s_add_u32 s41, s41, 4096")
    pre_ops = wo_ops[:]
    for q in range(4): pre_ops += b1_chunk_ops(vm, q, 's44', 's45')
    def check_p0b():
        L = p.newlabel('PB'); D = p.newlabel('PBD')
        vm.wait(['pb'])
        p("s_mov_b32 s62, %d" % OPT['SPIN'])
        p.label(L)
        p("v_xor_b32 v20, s6, v20\nv_xor_b32 v21, s6, v21\nv_xor_b32 v22, s6, v22\nv_xor_b32 v23, s6, v23")
        p("v_or3_b32 v20, v20, v21, v22\nv_or_b32 v20, v20, v23\nv_cmp_ne_u32 vcc, 0, v20")
        p("s_cbranch_vccz %s" % D)
        p("buffer_load_dwordx4 v[20:23], v3, s[8:11], s46 offen sc1\ns_waitcnt vmcnt(0)")
        p("s_sub_u32 s62, s62, 1\ns_cmp_lg_u32 s62, 0\ns_cbranch_scc1 %s" % L)
        p.label(D)
    for n in range(32):
        hk = {}
        if n < 16:
            def preQ(n=n):
                if n + 1 < 16: vm.wait([('K', n+1)])
                else: vm.wait([('Q', 1)])
            def preP(n=n):
                if n >= 1: vm.wait([('V', n-1)])
            def post0(n=n):
                if n + 5 < 16: ldK(n+5)
                if n == 0: ldQ(1)
                if n == 11: vm.issue("buffer_load_dwordx4 v[20:23], v3, s[8:11], s46 offen sc1", 'pb')
            def post1(n=n):
                if n + 3 < 16: ldV(n+3)
            hk = dict(preQ=preQ, preP=preP, post0=post0, post1=post1)
        else:
            def preP(n=n):
                if n == 16: vm.wait([('V', 15)])
            def postQ(n=n):
                if n == 16: ldQ(0)
                if n == 18: check_p0b()
            def take(k):
                for _ in range(k):
                    if pre_ops: run_fill(p, pre_ops.pop(0))
            def post0(n=n):
                if n == 17: wrO(0, QSTR)
                if n >= 19: take(2)
            def post1(n=n):
                if n >= 19: take(2)
            def preQ(n=n):
                if n == 31: vm.wait([('Q', 0)])
            hk = dict(preP=preP, postQ=postQ, post0=post0, post1=post1, preQ=preQ)
        tile(n, first=(n == 0), hooks=hk)
    while pre_ops: run_fill(p, pre_ops.pop(0))
    p("v_add_u32 v8, %d, v8\nv_add_u32 v9, %d, v9" % (2*QSTR, 2*QSTR))
    stamp(p, 'a2_peel')
    p("s_mov_b32 s35, 3")
    nq0 = vm.outstanding()
    lab = N + "_ATT"
    p.label(lab)
    for n in range(32):
        hk = {}
        if n == 0: hk['postQ'] = lambda: (p("buffer_load_dwordx4 v[%d:%d], v3, s[8:11], s28 offen sc1" % (Q[1], Q[1]+3)), p("s_add_u32 s28, s28, 1024\ns_min_u32 s28, s28, s50"))
        if n == 1: hk['post0'] = lambda: wrO(1, 0)
        if n == 15: hk['preQ'] = lambda: p("s_waitcnt vmcnt(0)")
        if n == 16: hk['postQ'] = lambda: (p("buffer_load_dwordx4 v[%d:%d], v3, s[8:11], s28 offen sc1" % (Q[0], Q[0]+3)), p("s_add_u32 s28, s28, 1024"))
        if n == 17: hk['post0'] = lambda: wrO(0, QSTR)
        if n == 31: hk['preQ'] = lambda: p("s_waitcnt vmcnt(0)")
        tile(n, hooks=hk)
    p("v_add_u32 v8, %d, v8\nv_add_u32 v9, %d, v9" % (2*QSTR, 2*QSTR))
    p("s_sub_u32 s35, s35, 1\ns_cmp_lg_u32 s35, 0\ns_cbranch_scc1 %s" % lab)
    vm.done = len(vm.q)
    sp = S[3]
    for c in range(8): p("v_cvt_pk_bf16_f32 v%d, v%d, v%d" % (P+c, sp+2*c, sp+2*c+1))
    PV(31, 0); PV(31, 1)
    p("s_nop 7\ns_nop 7")
    wrO(1, 0)
    stamp(p, 'a2_mm')
    p("s_mov_b32 s47, 0")
    p.label(N + "_RED")
    p("s_waitcnt lgkmcnt(0)\ns_barrier")
    p("s_mul_i32 s34, s20, %d\ns_add_u32 s34, s34, %d" % (2*QSTR, PART0))
    p("v_add_u32 v10, s34, v3\nv_lshl_add_u32 v11, v1, 2, s34")
    R = 64
    for k in range(2):
        for src in range(4):
            b = R + 48*k + 12*src
            off = k*QSTR + src*2304
            p("ds_read_b128 v[%d:%d], v10 offset:%d" % (b, b+3, off))
            p("ds_read_b128 v[%d:%d], v10 offset:%d" % (b+4, b+7, off+1024))
            p("ds_read_b32 v%d, v11 offset:%d" % (b+8, off+2048))
    p("s_mov_b32 s36, 0x%x\ns_mov_b32 s37, 0x%x" % (fbits(2.0**-60), fbits(2.0**60)))
    p("s_lshl_b32 s38, s26, 3\ns_lshl_b32 s39, s20, 1\ns_add_u32 s38, s38, s39\ns_lshl_b32 s38, s38, 5\ns_add_u32 s38, s38, s25\ns_lshl_b32 s38, s38, 10\ns_add_u32 s38, s38, %d\ns_add_u32 s38, s38, s7" % OF)
    p("s_add_u32 s39, s38, 32768")
    p("s_mov_b64 s[48:49], -1")
    for k in range(2):
        p("s_waitcnt lgkmcnt(%d)" % (12 if k == 0 else 0))
        b = R + 48*k
        for r in range(0, 8, 2):
            p("v_pk_add_f32 v[%d:%d], v[%d:%d], v[%d:%d]" % (b+r, b+r+1, b+r, b+r+1, b+12+r, b+12+r+1))
            p("v_pk_add_f32 v[%d:%d], v[%d:%d], v[%d:%d]" % (b+24+r, b+24+r+1, b+24+r, b+24+r+1, b+36+r, b+36+r+1))
        p("v_add_f32 v%d, v%d, v%d\nv_add_f32 v%d, v%d, v%d" % (b+8, b+8, b+20, b+32, b+32, b+44))
        p("v_add_f32 v%d, v%d, v%d" % (b+8, b+8, b+32))
        for r in range(0, 8, 2):
            p("v_pk_add_f32 v[%d:%d], v[%d:%d], v[%d:%d]" % (b+r, b+r+1, b+r, b+r+1, b+24+r, b+24+r+1))
        p("v_cmp_le_f32 vcc, s36, v%d\ns_and_b64 s[48:49], s[48:49], vcc" % (b+8))
        p("v_cmp_ge_f32 vcc, s37, v%d\ns_and_b64 s[48:49], s[48:49], vcc" % (b+8))
        p("v_rcp_f32 v%d, v%d" % (b+10, b+8))
        for r in range(0, 8, 2):
            p("v_pk_mul_f32 v[%d:%d], v[%d:%d], v[%d:%d] op_sel_hi:[1,0]" % (b+r, b+r+1, b+r, b+r+1, b+10, b+11))
        for j in range(4): p("v_cvt_pk_bf16_f32 v%d, v%d, v%d" % (24+4*k+j, b+2*j, b+2*j+1))
        vm.issue("buffer_store_dwordx4 v[%d:%d], v3, s[8:11], s%d offen sc1" % (24+4*k, 27+4*k, 38+k), 'st')
    p("s_cmp_eq_u64 s[48:49], -1\ns_cselect_b32 s36, 0, 1")
    p("v_mov_b32 v16, s36\ns_lshl_b32 s37, s20, 2\nv_mov_b32 v17, s37")
    p("ds_write_b32 v17, v16\ns_waitcnt lgkmcnt(0)\ns_barrier")
    p("v_mov_b32 v17, 0\nds_read_b128 v[16:19], v17\ns_waitcnt lgkmcnt(0)")
    p("v_or3_b32 v16, v16, v17, v18\nv_or_b32 v16, v16, v19\nv_readfirstlane_b32 s36, v16")
    p("s_andn2_b32 s36, s36, s47")
    p("s_cmp_lg_u32 s36, 0\ns_cbranch_scc1 %s_SLOW" % N)
    p("s_add_u32 s65, s64, %d" % (F_O*32768))
    publish(p, vm, "s65")
    stamp(p, 'a2_pub')
    for q in (4, 5):
        for f in b1_chunk_ops(vm, q, 's44', 's45'): run_fill(p, f)
    b1_pre_csp(p, vm)
    b1_pre_aug(p, vm)

def a2_slow(p):
    N = p.name
    p.label(N + "_SLOW")
    p("s_waitcnt vmcnt(0)")
    p("s_barrier")
    p("s_lshl_b32 s27, s25, 16\ns_add_u32 s27, s27, s7\ns_lshl_b32 s28, s26, 13\ns_add_u32 s28, s28, s27\ns_add_u32 s28, s28, %d" % QF)
    p("s_mov_b32 s35, 8\ns_mov_b32 s36, s28")
    p("s_lshl_b32 s34, s20, 8\ns_add_u32 s34, s34, %d\nv_lshl_add_u32 v10, v1, 2, s34" % MAXL)
    p.label(N + "_SL1")
    p("buffer_load_dwordx4 v[168:171], v3, s[8:11], s36 offen sc1\ns_waitcnt vmcnt(0)")
    p("v_mov_b32 v24, 0xff800000")
    for j in range(16):
        p("v_mfma_f32_32x32x16_bf16 v[64:79], %s, v[168:171], 0" % K(j))
        for r in range(0, 16, 2): p("v_max3_f32 v24, v24, v%d, v%d" % (64+r, 65+r))
    p("v_mov_b32 v25, v24\nv_permlane32_swap_b32 v24, v25\nv_max_f32 v24, v24, v25")
    p("ds_write_b32 v10, v24\nv_add_u32 v10, 1024, v10\ns_add_u32 s36, s36, 1024")
    p("s_sub_u32 s35, s35, 1\ns_cmp_lg_u32 s35, 0\ns_cbranch_scc1 %s_SL1" % N)
    p("s_waitcnt lgkmcnt(0)\ns_barrier")
    p("s_mov_b32 s35, 8\ns_mov_b32 s36, s28")
    p("v_lshlrev_b32 v10, 2, v1\nv_add_u32 v10, %d, v10" % MAXL)
    p("s_mul_i32 s34, s20, 2304\ns_add_u32 s34, s34, %d\nv_add_u32 v8, s34, v3\nv_lshl_add_u32 v9, v1, 2, s34" % PART0)
    p.label(N + "_SL2")
    p("buffer_load_dwordx4 v[168:171], v3, s[8:11], s36 offen sc1")
    for w in range(4): p("ds_read_b32 v%d, v10 offset:%d" % (24+w, 256*w))
    p("s_waitcnt vmcnt(0) lgkmcnt(0)")
    p("v_max3_f32 v24, v24, v25, v26\nv_max_f32 v24, v24, v27")
    for r in range(16): p("v_sub_f32 v%d, 0, v24" % (80+r))
    for j in range(16):
        p("v_mfma_f32_32x32x16_bf16 v[64:79], %s, v[168:171], v[80:95]" % K(j))
        for r in range(16): p("v_exp_f32 v%d, v%d" % (64+r, 64+r))
        for c in range(8): p("v_cvt_pk_bf16_f32 v%d, v%d, v%d" % (P+c, 64+2*c, 65+2*c))
        p("v_mfma_f32_32x32x16_bf16 v[128:143], %s, v[160:163], %s" % (VTf(j, 0), "0" if j == 0 else "v[128:143]"))
        p("v_mfma_f32_32x32x16_bf16 v[128:143], %s, v[164:167], v[128:143]" % VTf(j, 1))
    p("s_nop 7\ns_nop 7")
    p("ds_write_b128 v8, v[128:131]\nds_write_b128 v8, v[132:135] offset:1024\nds_write_b32 v9, v136 offset:2048")
    p("v_add_u32 v8, %d, v8\nv_add_u32 v9, %d, v9\nv_add_u32 v10, 1024, v10\ns_add_u32 s36, s36, 1024" % (QSTR, QSTR))
    p("s_sub_u32 s35, s35, 1\ns_cmp_lg_u32 s35, 0\ns_cbranch_scc1 %s_SL2" % N)
    p("s_mov_b32 s47, 1")
    p("s_branch %s_RED" % N)
```

```python
from mcommon import *

def setup_ids(p):
    p("s_and_b32 s27, s2, 7\ns_lshr_b32 s28, s2, 3")
    p("s_lshr_b32 s29, s27, 1\ns_and_b32 s30, s27, 1")
    p("s_lshl_b32 s21, s29, 2\ns_and_b32 s31, s28, 3\ns_add_u32 s21, s21, s31")
    p("s_lshl_b32 s22, s30, 3\ns_lshr_b32 s31, s28, 2\ns_add_u32 s22, s22, s31")
    p("s_lshl_b32 s23, s27, 2\ns_and_b32 s31, s28, 3\ns_add_u32 s23, s23, s31")
    p("s_lshr_b32 s24, s28, 2")
    p("s_lshl_b32 s25, s27, 2\ns_lshr_b32 s31, s28, 3\ns_add_u32 s25, s25, s31")
    p("s_and_b32 s26, s28, 7")
    p("v_lshlrev_b32 v3, 4, v1\nv_and_b32 v4, 31, v1\nv_lshrrev_b32 v5, 5, v1")
    p("s_lshl_b32 s27, s21, 1\ns_lshr_b32 s28, s20, 1\ns_add_u32 s27, s27, s28")
    p("s_lshr_b32 s28, s27, 2\ns_and_b32 s29, s27, 3\ns_lshl_b32 s29, s29, 3\ns_add_u32 s28, s28, s29")
    p("s_lshl_b32 s28, s28, 7\ns_and_b32 s29, s20, 1\ns_lshl_b32 s29, s29, 3\ns_add_u32 s28, s28, s29")
    p("v_bfe_u32 v6, v1, 1, 3\nv_lshlrev_b32 v6, 12, v6")
    p("v_and_b32 v7, 1, v1\nv_lshl_add_u32 v6, v7, 2, v6\nv_add_u32 v250, s28, v6")
    p("s_lshr_b32 s27, s25, 1\ns_lshr_b32 s28, s27, 3\ns_and_b32 s29, s27, 7\ns_lshl_b32 s29, s29, 5\ns_add_u32 s28, s28, s29")
    p("s_lshl_b32 s29, s20, 1\ns_add_u32 s29, s29, s28")
    p("s_lshr_b32 s30, s26, 1\ns_lshl_b32 s30, s30, 1\ns_and_b32 s31, s26, 1\ns_lshl_b32 s31, s31, 4\ns_add_u32 s30, s30, s31\ns_add_u32 s30, s30, s28")
    p("v_bfe_u32 v6, v1, 2, 2\nv_lshl_add_u32 v6, v6, 3, s29")
    p("v_bfe_u32 v7, v1, 2, 1\nv_lshl_add_u32 v7, v7, 3, s30")
    p("v_cmp_gt_u32 vcc, 16, v1\nv_cndmask_b32 v6, v7, v6, vcc")
    p("v_lshlrev_b32 v6, 7, v6\nv_and_b32 v7, 3, v1\nv_lshl_add_u32 v251, v7, 2, v6")
    p("s_lshr_b32 s27, s23, 2\ns_lshl_b32 s27, s27, 3\ns_lshl_b32 s28, s20, 1\ns_add_u32 s27, s27, s28\ns_lshl_b32 s27, s27, 7\ns_and_b32 s28, s23, 3\ns_lshl_b32 s28, s28, 2\ns_add_u32 s27, s27, s28")
    p("v_bfe_u32 v6, v1, 2, 1\nv_and_b32 v7, 3, v1\nv_lshl_add_u32 v6, v7, 6, v6\nv_lshlrev_b32 v6, 7, v6\nv_add_u32 v252, s27, v6")
    p("s_lshr_b32 s27, s23, 1\ns_lshr_b32 s28, s27, 2\ns_lshl_b32 s28, s28, 1\ns_and_b32 s29, s27, 3\ns_lshl_b32 s29, s29, 3\ns_add_u32 s28, s28, s29")
    p("s_lshr_b32 s29, s20, 1\ns_add_u32 s28, s28, s29\ns_and_b32 s29, s20, 1\ns_lshl_b32 s29, s29, 7\ns_add_u32 s28, s28, s29")
    p("s_lshl_b32 s28, s28, 7\ns_and_b32 s29, s23, 1\ns_lshl_b32 s29, s29, 3\ns_add_u32 s28, s28, s29")
    p("v_bfe_u32 v6, v1, 1, 2\nv_lshlrev_b32 v6, 12, v6\nv_and_b32 v7, 1, v1\nv_lshl_add_u32 v6, v7, 2, v6\nv_add_u32 v253, s28, v6")

def tile_ids(p):
    p("s_lshr_b32 s33, s20, 1\ns_lshl_b32 s34, s23, 1\ns_add_u32 s33, s33, s34")
    p("s_and_b32 s34, s20, 1\ns_lshl_b32 s35, s24, 1\ns_add_u32 s34, s34, s35")
    p("s_lshl_b32 s35, s33, 5\ns_lshl_b32 s36, s34, 1\ns_add_u32 s35, s35, s36\ns_lshl_b32 s35, s35, 10")

def tile_out(p, vm, base_sreg, XOFF, STOFF):
    p("s_add_u32 s36, s35, %d\ns_add_u32 s36, s36, %s" % (XOFF, base_sreg))
    vm.issue("buffer_store_dwordx4 v[16:19], v3, s[8:11], s36 offen sc1", 'st')
    vm.issue("buffer_store_dwordx4 v[20:23], v3, s[8:11], s36 offen offset:1024 sc1", 'st')
    p("s_mov_b32 s37, 0x3f803f80")
    p("v_mov_b32 v6, 0\nv_mov_b32 v7, 0")
    for j in range(8):
        p("v_dot2c_f32_bf16 v6, s37, v%d" % (16+j))
        p("v_dot2c_f32_bf16 v7, v%d, v%d" % (16+j, 16+j))
    p("v_permlane32_swap_b32 v6, v7")
    p("v_add_f32 v6, v6, v7")
    p("s_lshr_b32 s38, s34, 1\ns_lshl_b32 s38, s38, 15\ns_lshl_b32 s39, s33, 9\ns_add_u32 s38, s38, s39")
    p("s_and_b32 s39, s34, 1\ns_lshl_b32 s39, s39, 3\ns_add_u32 s38, s38, s39\ns_add_u32 s38, s38, %d\ns_add_u32 s38, s38, %s" % (STOFF, base_sreg))
    p("v_lshlrev_b32 v8, 4, v4\nv_lshl_add_u32 v8, v5, 2, v8")
    vm.issue("buffer_store_dword v6, v8, s[8:11], s38 offen sc1", 'st')

def srd(p, s, base, size):
    p("s_mov_b32 s%d, s%d\ns_mov_b32 s%d, s%d\ns_mov_b32 s%d, %d\ns_mov_b32 s%d, 0x00020000" % (s, base, s+1, base+1, s+2, size, s+3))

def lanecalc(p):
    p("v_lshrrev_b32 v10, 3, v1\nv_and_b32 v11, 7, v1\nv_mul_lo_u32 v10, v10, s44\nv_lshl_add_u32 v6, v11, 4, v10")
    p("s_lshl_b32 s50, s46, 7\ns_lshl_b32 s51, s20, 5\ns_add_u32 s50, s50, s51")
    p("s_mul_i32 s51, s50, s44\ns_lshl_b32 s52, s45, 7\ns_add_u32 s51, s51, s52\ns_lshl_b32 s53, s44, 3")
    p("v_bfe_u32 v12, v1, 2, 2\nv_lshl_add_u32 v12, v5, 2, v12\nv_lshlrev_b32 v12, 7, v12")
    p("v_and_b32 v9, 3, v1\nv_lshl_add_u32 v12, v9, 3, v12\nv_bfe_u32 v9, v1, 4, 1")

def plain_load(p, vm, srdreg):
    lanecalc(p)
    p("v_lshl_add_u32 v12, v9, 5, v12\ns_lshl_b32 s54, s20, 13\nv_add_u32 v12, s54, v12")
    for u in range(4):
        p("s_add_u32 m0, s54, %d" % (u*1024))
        vm.issue("buffer_load_dwordx4 v6, s[%d:%d], s51 offen lds" % (srdreg, srdreg+3), 'pl')
        if u < 3: p("s_add_u32 s51, s51, s53")

def plain_frags(p, vm):
    vm.wait(['pl'])
    for kg in range(2):
        for tau in range(2):
            b = 32 + 4*(2*kg+tau)
            p("ds_read_b64_tr_b16 v[%d:%d], v12 offset:%d" % (b, b+1, kg*2048 + tau*64))
            p("ds_read_b64_tr_b16 v[%d:%d], v12 offset:%d" % (b+2, b+3, kg*2048 + tau*64 + 1024))
    p("s_lshr_b32 s55, s50, 4")

def plain_store(p, vm):
    p("s_waitcnt lgkmcnt(0)")
    for kg in range(2):
        for tau in range(2):
            b = 32 + 4*(2*kg+tau)
            vm.issue("buffer_store_dwordx4 v[%d:%d], v3, s[8:11], s%d offen sc1" % (b, b+3, 56+tau), 'st')
        if kg == 0:
            p("s_add_u32 s56, s56, s58\ns_add_u32 s57, s57, s58")

def p0a(p):
    vm = VM(p); N = p.name
    p("s_load_dwordx2 s[12:13], s[0:1], 0\ns_load_dwordx2 s[16:17], s[0:1], 8\ns_load_dwordx2 s[28:29], s[0:1], 64")
    tile_ids(p)
    p("v_lshlrev_b32 v6, 10, v4\nv_lshl_add_u32 v6, v5, 4, v6")
    p("s_lshl_b32 s36, s33, 15\ns_lshl_b32 s37, s34, 6\ns_add_u32 s36, s36, s37")
    p("s_waitcnt lgkmcnt(0)")
    p("s_mov_b32 s14, %d\ns_mov_b32 s15, 0x00020000" % (2048*512*2))
    p("s_mov_b32 s18, %d\ns_mov_b32 s19, 0x00020000" % (512*3072))
    p("s_mov_b32 s30, 256\ns_mov_b32 s31, 0x00020000")
    vm.issue("buffer_load_dwordx4 v[16:19], v6, s[12:15], s36 offen", 'x')
    vm.issue("buffer_load_dwordx4 v[20:23], v6, s[12:15], s36 offen offset:32", 'x')
    p("s_or_b32 s37, s2, s20\ns_cmp_eq_u32 s37, 0\ns_cbranch_scc0 %s_NOTAG" % N)
    p("s_memrealtime s[38:39]\ns_waitcnt lgkmcnt(0)\ns_or_b32 s38, s38, 1")
    p("v_mov_b32 v8, s38\nv_mov_b32 v9, 0")
    p("s_mov_b64 exec, 1")
    p("buffer_store_dword v8, v9, s[28:31], 0 offen sc1")
    p("s_mov_b64 exec, -1")
    p.label(N + "_NOTAG")
    p("s_cmp_ge_u32 s2, 96\ns_cbranch_scc1 %s_NOQ1" % N)
    p("s_mul_i32 s46, s2, 171\ns_lshr_b32 s46, s46, 12\ns_mul_i32 s49, s46, 24\ns_sub_u32 s45, s2, s49\ns_mov_b32 s44, 3072")
    vq = VM(p)
    plain_load(p, vq, 16)
    p.label(N + "_NOQ1")
    p("s_waitcnt vmcnt(4)")
    p("s_cmp_ge_u32 s2, 96\ns_cbranch_scc0 %s_XW\ns_waitcnt vmcnt(0)" % N)
    p.label(N + "_XW")
    for b in (16, 20):
        p("v_permlane32_swap_b32 v%d, v%d\nv_permlane32_swap_b32 v%d, v%d" % (b, b+2, b+1, b+3))
    v2 = VM(p)
    tile_out(p, v2, "s7", XA, STA)
    L = p.newlabel('T'); D = p.newlabel('TD')
    p("s_mov_b32 s62, %d" % OPT['SPIN'])
    p("v_mov_b32 v9, 0")
    p.label(L)
    p("buffer_load_dword v8, v9, s[28:31], 0 offen sc1")
    p("s_waitcnt vmcnt(0)")
    p("v_readfirstlane_b32 s6, v8")
    p("s_cmp_lg_u32 s6, 0\ns_cbranch_scc1 %s" % D)
    p("s_sub_u32 s62, s62, 1\ns_cmp_lg_u32 s62, 0\ns_cbranch_scc1 %s" % L)
    p.label(D)
    publish(p, None, "s64")
    p("s_cmp_ge_u32 s2, 96\ns_cbranch_scc1 %s_NOQ2" % N)
    v3_ = VM(p); v3_.q = ['pl']; v3_.done = 1
    plain_frags(p, v3_)
    for tau in range(2):
        p("s_lshl_b32 s59, s45, 1\ns_add_u32 s59, s59, %d" % tau)
        p("s_and_b32 s60, s59, 15\ns_lshr_b32 s61, s59, 4")
        p("s_lshl_b32 s60, s60, 5\ns_add_u32 s60, s60, s55\ns_mul_i32 s60, s60, 3\ns_add_u32 s60, s60, s61")
        p("s_lshl_b32 s60, s60, 10\ns_add_u32 s%d, s60, %d" % (56+tau, WQKV_F))
    p("s_mov_b32 s58, 3072")
    plain_store(p, v3_)
    p("s_mov_b32 s37, 0x3f803f80")
    p("v_mov_b32 v10, 0\nv_mov_b32 v11, 0")
    for kg in range(2):
        for tau in range(2):
            b = 32 + 4*(2*kg+tau)
            for j in range(4):
                p("v_dot2c_f32_bf16 v%d, s37, v%d" % (10+tau, b+j))
    p("v_permlane32_swap_b32 v10, v11\nv_add_f32 v10, v10, v11")
    p("v_lshlrev_b32 v12, 2, v1\ns_lshl_b32 s59, s20, 8\nv_add_u32 v13, s59, v12")
    p("ds_write_b32 v13, v10 offset:36864\ns_waitcnt lgkmcnt(0)\ns_barrier")
    p("s_cmp_eq_u32 s20, 0\ns_cbranch_scc0 %s_Q3" % N)
    for w in range(4):
        p("ds_read_b32 v%d, v12 offset:%d" % (48+w, 36864+256*w))
    p("s_waitcnt lgkmcnt(0)")
    p("v_add_f32 v48, v48, v49\nv_add_f32 v50, v50, v51\nv_add_f32 v48, v48, v50")
    p("s_lshl_b32 s59, s45, 10\ns_lshl_b32 s60, s46, 2\ns_add_u32 s59, s59, s60\ns_add_u32 s59, s59, %d" % CSP_QKV)
    p("buffer_store_dword v48, v3, s[8:11], s59 offen sc1")
    p.label(N + "_Q3")
    publish(p, None, "%d" % (FLAGS + F_P0Q*32768))
    p.label(N + "_NOQ2")

def p0b(p):
    N = p.name; L = lambda x: N + "_B" + x
    vm = VM(p)
    p("s_load_dwordx2 s[12:13], s[0:1], 16\ns_load_dwordx2 s[16:17], s[0:1], 48\ns_load_dwordx2 s[28:29], s[0:1], 32\ns_load_dwordx2 s[40:41], s[0:1], 40")
    p("s_waitcnt lgkmcnt(0)")
    p("s_cmp_ge_u32 s2, 96\ns_cbranch_scc0 %s" % L("LO"))
    p("s_cmp_ge_u32 s2, 208\ns_cbranch_scc0 %s" % L("GU"))
    p("s_sub_u32 s48, s2, %d\ns_branch %s" % (208-64, L("WD")))
    p.label(L("LO"))
    p("s_cmp_ge_u32 s2, 32\ns_cbranch_scc0 %s" % L("WO"))
    p("s_sub_u32 s48, s2, 32")
    p.label(L("WD"))
    p("s_mov_b32 s12, s16\ns_mov_b32 s13, s17\ns_mov_b32 s14, %d\ns_mov_b32 s62, 112\ns_mov_b32 s63, %d" % (1792*1024, WD_F))
    p("s_branch %s" % L("PL"))
    p.label(L("WO"))
    p("s_mov_b32 s48, s2\ns_mov_b32 s14, %d\ns_mov_b32 s62, 32\ns_mov_b32 s63, %d" % (512*1024, WO_F))
    p.label(L("PL"))
    p("s_mov_b32 s15, 0x00020000\ns_and_b32 s45, s48, 7\ns_lshr_b32 s46, s48, 3\ns_mov_b32 s44, 1024")
    plain_load(p, vm, 12)
    plain_frags(p, vm)
    for tau in range(2):
        p("s_lshl_b32 s59, s45, 1\ns_add_u32 s59, s59, %d" % tau)
        p("s_mul_i32 s60, s59, s62\ns_add_u32 s60, s60, s55\ns_lshl_b32 s60, s60, 10\ns_add_u32 s%d, s60, s63" % (56+tau))
    p("s_mov_b32 s58, 1024")
    plain_store(p, vm)
    p("s_branch %s" % L("END"))
    p.label(L("GU"))
    vm = VM(p)
    p("s_sub_u32 s48, s2, 96")
    p("s_mul_i32 s46, s48, 147\ns_lshr_b32 s46, s46, 12\ns_mul_i32 s49, s46, 28\ns_sub_u32 s45, s48, s49")
    p("s_mov_b32 s30, %d\ns_mov_b32 s31, 0x00020000\ns_mov_b32 s44, 3584" % (512*3584))
    p("s_mov_b32 s42, %d\ns_mov_b32 s43, 0x00020000" % (512*3584))
    lanecalc(p)
    p("v_lshl_add_u32 v12, v9, 12, v12\ns_lshl_b32 s54, s20, 13\nv_add_u32 v12, s54, v12")
    for u in range(4):
        p("s_add_u32 m0, s54, %d" % (u*1024))
        vm.issue("buffer_load_dwordx4 v6, s[28:31], s51 offen lds", 'pl')
        p("s_add_u32 m0, s54, %d" % (4096+u*1024))
        vm.issue("buffer_load_dwordx4 v6, s[40:43], s51 offen lds", 'pl')
        if u < 3: p("s_add_u32 s51, s51, s53")
    p("s_lshr_b32 s55, s50, 4")
    for i in range(4):
        p("s_lshl_b32 s59, s45, 2\ns_add_u32 s59, s59, %d" % i)
        p("s_mul_i32 s60, s59, 147\ns_lshr_b32 s60, s60, 10\ns_mul_i32 s61, s60, 7\ns_sub_u32 s61, s59, s61")
        p("s_mul_i32 s62, s55, 3\ns_add_u32 s62, s62, s61\ns_lshl_b32 s63, s61, 5\ns_add_u32 s63, s63, s55")
        p("s_cmp_lt_u32 s61, 3\ns_cselect_b32 s62, s62, s63\ns_movk_i32 s%d, 0x400\ns_cselect_b32 s%d, 3072, s%d" % (72+i, 72+i, 72+i))
        p("s_mul_i32 s60, s60, 224\ns_add_u32 s60, s60, s62\ns_lshl_b32 s60, s60, 10\ns_add_u32 s%d, s60, %d" % (68+i, WGU_F))
    vm.wait(['pl'])
    for kg in range(2):
        for i in range(4):
            b = 32 + 4*(4*kg+i)
            p("ds_read_b64_tr_b16 v[%d:%d], v12 offset:%d" % (b, b+1, kg*2048 + i*32))
            p("ds_read_b64_tr_b16 v[%d:%d], v12 offset:%d" % (b+2, b+3, kg*2048 + i*32 + 1024))
    p("s_waitcnt lgkmcnt(0)")
    for kg in range(2):
        for i in range(4):
            b = 32 + 4*(4*kg+i)
            vm.issue("buffer_store_dwordx4 v[%d:%d], v3, s[8:11], s%d offen sc1" % (b, b+3, 68+i), 'st')
            if kg == 0:
                p("s_add_u32 s%d, s%d, s%d" % (68+i, 68+i, 72+i))
    p("s_mov_b32 s37, 0x3f803f80")
    for i in range(4): p("v_mov_b32 v%d, 0" % (8+i))
    for kg in range(2):
        for i in range(4):
            b = 32 + 4*(4*kg+i)
            for j in range(4):
                p("v_dot2c_f32_bf16 v%d, s37, v%d" % (8+i, b+j))
    p("v_permlane32_swap_b32 v8, v9\nv_permlane32_swap_b32 v10, v11\nv_add_f32 v8, v8, v9\nv_add_f32 v10, v10, v11")
    p("v_lshlrev_b32 v14, 2, v1\ns_lshl_b32 s59, s20, 9\nv_add_u32 v15, s59, v14")
    p("ds_write_b32 v15, v8 offset:32768\nds_write_b32 v15, v10 offset:33024\ns_waitcnt lgkmcnt(0)\ns_barrier")
    p("s_cmp_lt_u32 s20, 2\ns_cbranch_scc0 %s" % L("END"))
    p("s_lshl_b32 s59, s20, 8\nv_add_u32 v15, s59, v14")
    for w in range(4):
        p("ds_read_b32 v%d, v15 offset:%d" % (16+w, 32768+512*w))
    p("s_waitcnt lgkmcnt(0)")
    p("v_add_f32 v16, v16, v17\nv_add_f32 v18, v18, v19\nv_add_f32 v16, v16, v18")
    p("s_lshl_b32 s59, s45, 11\ns_lshl_b32 s60, s20, 10\ns_add_u32 s59, s59, s60\ns_lshl_b32 s60, s46, 2\ns_add_u32 s59, s59, s60\ns_add_u32 s59, s59, %d" % CSP_GU)
    p("buffer_store_dword v16, v3, s[8:11], s59 offen sc1")
    p.label(L("END"))
    p("s_waitcnt vmcnt(0)")
    p("s_barrier")
    p("s_cmp_eq_u32 s20, 0\ns_cbranch_scc0 %s" % L("NF"))
    p("s_lshl_b32 s62, s2, 2\ns_add_u32 s62, s62, %d" % (FLAGS + F_P0B*32768))
    p("v_mov_b32 v16, s6\nv_mov_b32 v17, 0\ns_mov_b64 exec, 1")
    p("buffer_store_dword v16, v17, s[8:11], s62 offen sc1")
    p("s_mov_b64 exec, -1")
    p.label(L("NF"))
```

```python
from mcommon import *
from m_p0 import tile_ids, tile_out, srd
from m_xr import a1_pre, wd_ops, wd_base, wd_reg, b1_wbase, b1_chunk_ops

ACC = 64
def sk_reduce(p, vm):
    p("s_lshl_b32 s37, s20, 12\nv_add_u32 v6, s37, v3")
    for tau in range(4):
        for q in range(4):
            A = ACC + 16*tau + 4*q
            p("ds_write_b128 v6, v[%d:%d] offset:%d" % (A, A+3, tau*16384 + q*1024))
    p("s_lshl_b32 s37, s20, 14\nv_add_u32 v7, s37, v3")
    p("s_waitcnt lgkmcnt(0)\ns_barrier")
    R = 128
    for src in range(4):
        for q in range(4):
            p("ds_read_b128 v[%d:%d], v7 offset:%d" % (R+16*src+4*q, R+16*src+4*q+3, src*4096 + q*1024))
    vm.wait(['res'])
    for j in range(8):
        p("v_lshlrev_b32 v%d, 16, v%d" % (32+2*j, 8+j))
        p("v_and_b32 v%d, 0xffff0000, v%d" % (33+2*j, 8+j))
    p("s_waitcnt lgkmcnt(8)")
    for r in range(0, 16, 2): p("v_pk_add_f32 v[%d:%d], v[%d:%d], v[%d:%d]" % (R+r, R+r+1, R+r, R+r+1, R+16+r, R+17+r))
    for r in range(0, 16, 2): p("v_pk_add_f32 v[%d:%d], v[%d:%d], v[%d:%d]" % (R+r, R+r+1, R+r, R+r+1, 32+r, 33+r))
    p("s_waitcnt lgkmcnt(0)")
    for r in range(0, 16, 2): p("v_pk_add_f32 v[%d:%d], v[%d:%d], v[%d:%d]" % (R+32+r, R+33+r, R+32+r, R+33+r, R+48+r, R+49+r))
    for r in range(0, 16, 2): p("v_pk_add_f32 v[%d:%d], v[%d:%d], v[%d:%d]" % (R+r, R+r+1, R+r, R+r+1, R+32+r, R+33+r))
    for j in range(8): p("v_cvt_pk_bf16_f32 v%d, v%d, v%d" % (16+j, R+2*j, R+2*j+1))

def res_loads(p, vm, XOFF):
    tile_ids(p)
    p("s_add_u32 s36, s35, %d\ns_add_u32 s36, s36, s7" % XOFF)
    vm.issue("buffer_load_dwordx4 v[8:11], v3, s[8:11], s36 offen sc1", 'res')
    vm.issue("buffer_load_dwordx4 v[12:15], v3, s[8:11], s36 offen offset:1024 sc1", 'res')

def a3_phase(p):
    vm = VM(p)
    res_loads(p, vm, XA)
    wd_base(p)
    p("s_lshl_b32 s28, s23, 16\ns_lshl_b32 s29, s20, 13\ns_add_u32 s28, s28, s29\ns_add_u32 s28, s28, %d\ns_add_u32 s28, s28, s7\ns_add_u32 s29, s28, 32768" % OF)
    p("s_add_u32 s65, s64, %d" % (F_O*32768))
    spin_wait(p, vm, "v252", "s65")
    stamp(p, 'a3_wait')
    for g in range(8):
        for a in range(2):
            r = 8*g + 4*a
            vm.issue("buffer_load_dwordx4 a[%d:%d], v3, s[8:11], s%d offen offset:%d sc1" % (r, r+3, 28+a, 1024*(g % 4)), ('X', g, a))
        if g == 3: p("s_add_u32 s28, s28, 4096\ns_add_u32 s29, s29, 4096")
    for f in wd_ops(vm, 0, 8): run_fill(p, f)
    for g in range(8):
        for a in range(2):
            vm.wait([('X', g, a)])
            for b in range(2):
                A = ACC + 16*(2*a+b)
                c = "0" if g == 0 else "v[%d:%d]" % (A, A+15)
                p("v_mfma_f32_32x32x16_bf16 v[%d:%d], a[%d:%d], a[%d:%d], %s" % (A, A+15, 192+8*g+4*b, 195+8*g+4*b, 8*g+4*a, 8*g+4*a+3, c))
    stamp(p, 'a3_mm')
    sk_reduce(p, vm)
    tile_out(p, vm, "s7", XB, STB)
    p("s_add_u32 s65, s64, %d" % (F_XB*32768))
    publish(p, vm, "s65")
    stamp(p, 'a3_pub')
    p("s_barrier")
    b1_wbase(p, 6)
    for q in range(6, 10):
        for f in b1_chunk_ops(vm, q): run_fill(p, f)

def b2_pre(p):
    vm = VM(p)
    for f in wd_ops(vm, 21, 28): run_fill(p, f)

def b2_phase(p):
    vm = VM(p); N = p.name
    res_loads(p, vm, XB)
    p("s_mul_i32 s28, s23, %d\ns_mul_i32 s29, s20, %d\ns_add_u32 s28, s28, s29\ns_add_u32 s28, s28, %d\ns_add_u32 s28, s28, s7\ns_add_u32 s29, s28, %d" % (2*112*1024, 28*1024, HF, 112*1024))
    p("s_add_u32 s65, s64, %d" % (F_H*32768))
    spin_wait(p, vm, "v253", "s65")
    stamp(p, 'b2_wait')
    NG = 28; RD = 16
    def xl(g):
        for a in range(2):
            r = 8*(g % RD) + 4*a
            vm.issue("buffer_load_dwordx4 a[%d:%d], v3, s[8:11], s%d offen offset:%d sc1" % (r, r+3, 28+a, 1024*(g % 4)), ('X', g, a))
        if g % 4 == 3 and g < NG-1: p("s_add_u32 s28, s28, 4096\ns_add_u32 s29, s29, 4096")
    PRE = 6
    for g in range(PRE): xl(g)
    nxt = PRE
    for g in range(NG):
        for a in range(2):
            vm.wait([('X', g, a)])
            for b in range(2):
                A = ACC + 16*(2*a+b)
                c = "0" if g == 0 else "v[%d:%d]" % (A, A+15)
                w = wd_reg(g, b)
                r = 8*(g % RD) + 4*a
                p("v_mfma_f32_32x32x16_bf16 v[%d:%d], %s, a[%d:%d], %s" % (A, A+15, w, r, r+3, c))
            if a == 0 and nxt < NG and nxt - RD < g:
                xl(nxt); nxt += 1
        if g < 4 and nxt < NG: xl(nxt); nxt += 1
    assert nxt == NG
    stamp(p, 'b2_mm')
    sk_reduce(p, vm)
    p("s_cmp_eq_u32 s3, 0\ns_cbranch_scc0 %s_FINAL" % N)
    p("s_add_u32 s40, s7, %d" % LS)
    tile_out(p, vm, "s40", XA, STA)
    p("s_add_u32 s65, s64, %d" % (5*32768))
    publish(p, vm, "s65")
    stamp(p, 'b2_pub')
    a1_pre(p)
    p("s_mov_b32 s3, 1\ns_add_u32 s7, s7, %d\ns_add_u32 s64, s64, %d" % (LS, 5*32768))
    p("s_branch %s_LAYER" % N)
    p.label(N + "_FINAL")
    p("s_load_dwordx2 s[12:13], s[0:1], 56")
    for i in range(2):
        p("v_permlane32_swap_b32 v%d, v%d" % (16+4*i, 18+4*i))
        p("v_permlane32_swap_b32 v%d, v%d" % (17+4*i, 19+4*i))
    p("v_lshlrev_b32 v6, 10, v4\nv_lshl_add_u32 v6, v5, 4, v6")
    p("s_lshl_b32 s38, s33, 15\ns_lshl_b32 s39, s34, 6\ns_add_u32 s38, s38, s39")
    p("s_waitcnt lgkmcnt(0)")
    p("s_mov_b32 s14, %d\ns_mov_b32 s15, 0x00020000" % (2048*512*2))
    p("buffer_store_dwordx4 v[16:19], v6, s[12:15], s38 offen")
    p("buffer_store_dwordx4 v[20:23], v6, s[12:15], s38 offen offset:32")
```

```python
from mcommon import *

def stats_loads(p, vm, ST):
    p("v_lshlrev_b32 v6, 4, v4\nv_lshl_add_u32 v6, v5, 17, v6")
    p("s_lshl_b32 s28, s27, 9\ns_add_u32 s28, s28, %d\ns_add_u32 s28, s28, s7" % ST)
    for m in range(4):
        vm.issue("buffer_load_dwordx4 v[%d:%d], v6, s[8:11], s28 offen sc1" % (16+4*m, 19+4*m), 'stats')
        if m < 3: p("s_add_u32 s28, s28, 32768")

def stats_compute(p):
    p("v_pk_add_f32 v[16:17], v[16:17], v[18:19]\nv_pk_add_f32 v[20:21], v[20:21], v[22:23]")
    p("v_pk_add_f32 v[24:25], v[24:25], v[26:27]\nv_pk_add_f32 v[28:29], v[28:29], v[30:31]")
    p("v_pk_add_f32 v[16:17], v[16:17], v[20:21]\nv_pk_add_f32 v[24:25], v[24:25], v[28:29]")
    p("v_pk_add_f32 v[16:17], v[16:17], v[24:25]")
    p("v_mov_b32 v18, v16\nv_mov_b32 v19, v17")
    p("v_permlane32_swap_b32 v16, v18\nv_permlane32_swap_b32 v17, v19")
    p("v_add_f32 v16, v16, v18\nv_add_f32 v17, v17, v19")
    p("v_mul_f32 v16, 0x%x, v16" % fbits(1.0/512))
    p("v_mul_f32 v17, 0x%x, v17" % fbits(1.0/512))
    p("v_fma_f32 v17, -v16, v16, v17")
    p("v_max_f32 v17, 0, v17")
    p("v_add_f32 v17, 0x%x, v17" % fbits(1e-5))
    p("v_rsq_f32 v60, v17")
    p("v_sub_f32 v18, 0, v16")
    p("v_cvt_pk_bf16_f32 v56, v18, v18")
    p("v_and_b32 v19, 0xffff0000, v56")
    p("v_sub_f32 v19, v18, v19")
    p("v_cvt_pk_bf16_f32 v57, v19, v19")
    p("v_mul_f32 v61, v17, v60")
    p("v_cmp_gt_u32 vcc, 32, v1")
    p("v_mov_b32 v58, 0\nv_mov_b32 v59, 0")
    p("v_cndmask_b32 v56, 0, v56, vcc\nv_cndmask_b32 v57, 0, v57, vcc")

def aug_A(p, src, dst):
    p("v_add_f32 v%d, v%d, v%d\nv_add_f32 v%d, v%d, v%d" % (src, src, src+1, src+2, src+2, src+3))
    p("v_add_f32 v%d, v%d, v%d" % (src, src, src+2))
    p("v_cvt_pk_bf16_f32 v%d, v%d, v%d" % (src+1, src, src))
    p("v_and_b32 v%d, 0xffff0000, v%d" % (src+1, src+1))
    p("v_sub_f32 v%d, v%d, v%d" % (src+2, src, src+1))
    p("v_cvt_pk_bf16_f32 v%d, v%d, v%d" % (dst, src+1, src+2))
    p("v_mov_b32 v%d, v%d\nv_mov_b32 v%d, 0\nv_mov_b32 v%d, 0" % (dst+1, dst, dst+2, dst+3))

AUG1 = 236
AUGB = 208

def a1_pre(p):
    vm = VM(p)
    p("v_lshlrev_b32 v7, 4, v4")
    p("s_lshl_b32 s28, s22, 9\ns_add_u32 s28, s28, %d" % CSP_QKV)
    for i in range(3):
        vm.issue("buffer_load_dwordx4 v[%d:%d], v7, s[8:11], s28 offen sc1" % (32+4*i, 35+4*i), 'csp')
        if i < 2: p("s_add_u32 s28, s28, 8192")
    p("s_mul_i32 s30, s22, 98304\ns_mul_i32 s31, s20, 24576\ns_add_u32 s30, s30, s31\ns_add_u32 s30, s30, %d" % WQKV_F)
    p("s_add_u32 s31, s31, 65536")
    for q in range(6):
        p("s_add_u32 m0, s31, %d" % (q*4096))
        for j in range(4):
            vm.issue("buffer_load_dwordx4 v3, s[8:11], s30 offen offset:%d sc1 lds" % (1024*j), 'W')
        if q < 5: p("s_add_u32 s30, s30, 4096")
    vm.wait(['csp'])
    for i in range(3): aug_A(p, 32+4*i, AUG1+4*i)

def a1_main(p):
    vm = VM(p)
    p("s_lshl_b32 s27, s21, 2\ns_add_u32 s27, s27, s20")
    spin_wait(p, vm, "v250", "s64")
    stamp(p, 'a1_wait')
    stats_loads(p, vm, STA)
    p("s_lshl_b32 s32, s27, 15\ns_add_u32 s32, s32, %d\ns_add_u32 s32, s32, s7" % XA)
    def xload(g):
        vm.issue("buffer_load_dwordx4 a[%d:%d], v3, s[8:11], s32 offen offset:%d sc1" % (4*g, 4*g+3, 1024*(g % 4)), ('X', g))
        if g % 4 == 3 and g < 31: p("s_add_u32 s32, s32, 4096")
    NX0 = 10
    for g in range(NX0): xload(g)
    p("v_add_u32 v8, 65536, v3\nv_add_u32 v9, 0x20000, v3")
    p("s_lshl_b32 s34, s22, 17\ns_lshl_b32 s35, s27, 10\ns_add_u32 s34, s34, s35\ns_add_u32 s34, s34, s7")
    p("s_add_u32 s35, s34, %d\ns_add_u32 s36, s35, 65536" % QF)
    p("s_add_u32 s37, s34, %d\ns_add_u32 s38, s37, 65536" % KF)
    p("s_add_u32 s39, s34, %d" % VT)
    p("v_bfe_u32 v10, v4, 4, 1\nv_lshlrev_b32 v10, 16, v10\nv_lshl_add_u32 v10, v5, 8, v10\nv_and_b32 v11, 15, v4\nv_lshl_add_u32 v10, v11, 4, v10")
    p("s_lshl_b32 s40, s20, 14")
    p("v_lshl_add_u32 v11, v4, 2, s40\nv_lshl_add_u32 v12, v5, 4, s40")
    vm.wait(['stats'])
    stats_compute(p)
    p("ds_write_b32 v11, v60")
    p("v_mul_f32 v62, 0x%x, v60" % fbits(0.25*LOG2E))
    p("s_barrier")
    ACC = 64; WF = 112; NWF = 8; D = 6
    p("v_mfma_f32_32x32x16_bf16 v[%d:%d], v[%d:%d], v[56:59], 0" % (ACC, ACC+15, AUG1, AUG1+3))
    p("v_mfma_f32_32x32x16_bf16 v[%d:%d], v[%d:%d], v[56:59], 0" % (ACC+16, ACC+31, AUG1+4, AUG1+7))
    p("v_mfma_f32_32x32x16_bf16 v[%d:%d], v[56:59], v[%d:%d], 0" % (ACC+32, ACC+47, AUG1+8, AUG1+11))
    p("s_waitcnt lgkmcnt(0)")
    for q in range(4): p("ds_read_b128 v[%d:%d], v12 offset:%d" % (144+4*q, 147+4*q, 32*q))
    n = 96
    def rd(u):
        o = u*1024
        base, off = ('v8', o) if o < 65536 else ('v9', o-65536)
        r = WF + 4*(u % NWF)
        p("ds_read_b128 v[%d:%d], %s offset:%d" % (r, r+3, base, off))
    for u in range(D): rd(u)
    stamp(p, 'a1_go')
    for s in range(n):
        g, i = s // 3, s % 3
        if i == 0: vm.wait([('X', g)])
        nout = min(s + D, n) - s
        p("s_waitcnt lgkmcnt(%d)" % (nout - 1))
        r = WF + 4*(s % NWF); A = ACC + 16*i
        x = "a[%d:%d]" % (4*g, 4*g+3); w = "v[%d:%d]" % (r, r+3)
        if i < 2: p("v_mfma_f32_32x32x16_bf16 v[%d:%d], %s, %s, v[%d:%d]" % (A, A+15, w, x, A, A+15))
        else:     p("v_mfma_f32_32x32x16_bf16 v[%d:%d], %s, %s, v[%d:%d]" % (A, A+15, x, w, A, A+15))
        if s + D < n: rd(s + D)
        if i == 1 and g + NX0 < 32: xload(g + NX0)
    p("s_barrier")
    stamp(p, 'a1_mm')
    for r in range(0, 16, 2): p("v_pk_mul_f32 v[%d:%d], v[%d:%d], v[62:63] op_sel_hi:[1,0]" % (ACC+r, ACC+r+1, ACC+r, ACC+r+1))
    for r in range(8): p("v_cvt_pk_bf16_f32 v%d, v%d, v%d" % (112+r, ACC+2*r, ACC+2*r+1))
    vm.issue("buffer_store_dwordx4 v[112:115], v3, s[8:11], s35 offen sc1", 'st')
    vm.issue("buffer_store_dwordx4 v[116:119], v3, s[8:11], s36 offen sc1", 'st')
    A = ACC + 16
    for r in range(0, 16, 2): p("v_pk_mul_f32 v[%d:%d], v[%d:%d], v[60:61] op_sel_hi:[1,0]" % (A+r, A+r+1, A+r, A+r+1))
    for r in range(8): p("v_cvt_pk_bf16_f32 v%d, v%d, v%d" % (120+r, A+2*r, A+2*r+1))
    vm.issue("buffer_store_dwordx4 v[120:123], v3, s[8:11], s37 offen sc1", 'st')
    vm.issue("buffer_store_dwordx4 v[124:127], v3, s[8:11], s38 offen sc1", 'st')
    A = ACC + 32
    for r in range(0, 16, 2): p("v_pk_mul_f32 v[%d:%d], v[%d:%d], v[%d:%d]" % (A+r, A+r+1, A+r, A+r+1, 144+r, 145+r))
    for r in range(8): p("v_cvt_pk_bf16_f32 v%d, v%d, v%d" % (128+r, A+2*r, A+2*r+1))
    vm.issue("buffer_store_dwordx4 v[128:131], v10, s[8:11], s39 offen sc1", 'st')
    vm.issue("buffer_store_dwordx4 v[132:135], v10, s[8:11], s39 offen offset:512 sc1", 'st')
    p("s_add_u32 s65, s64, %d" % (F_QKV*32768))
    publish(p, vm, "s65")
    stamp(p, 'a1_pub')

SLOTSEQ = [6, 7, 8, 9, 4, 5, 0, 1, 2, 3]
def b1_chunk_ops(vm, q, sw='s30', sm='s31'):
    L = ["s_add_u32 m0, %s, %d" % (sm, SLOTSEQ[q % 10]*16384)]
    for j in range(4):
        L.append(lambda j=j, q=q: vm.issue("buffer_load_dwordx4 v3, s[8:11], %s offen offset:%d sc1 lds" % (sw, 1024*j), ('W', q)))
    L.append("s_add_u32 %s, %s, 16384" % (sw, sw))
    return L
def b1_wbase(p, q0, sw='s30', sm='s31'):
    p("s_mul_i32 %s, s22, %d\ns_lshl_b32 %s, s20, 12\ns_add_u32 %s, %s, %s\ns_add_u32 %s, %s, %d" % (sw, 224*1024, sm, sw, sw, sm, sw, sw, WGU_F + q0*16384))

def b1_pre_csp(p, vm):
    p("v_lshlrev_b32 v7, 4, v4")
    p("s_mul_i32 s28, s22, %d\ns_add_u32 s28, s28, %d" % (7*512, CSP_GU))
    for i in range(7):
        vm.issue("buffer_load_dwordx4 v[%d:%d], v7, s[8:11], s28 offen offset:%d sc1" % (32+4*i, 35+4*i, 512*i), 'csp')
def b1_pre_aug(p, vm):
    vm.wait(['csp'])
    for i in range(7): aug_A(p, 32+4*i, AUGB+4*i)

WTA = 208
WTB = 128
def wd_reg(g, b):
    if g < 16: r = 128 + 8*g + 4*b; return "a[%d:%d]" % (r, r+3)
    if g < 21: r = WTA + 8*(g-16) + 4*b
    else: r = WTB + 8*(g-21) + 4*b
    return "v[%d:%d]" % (r, r+3)
def wd_ops(vm, g0, g1):
    L = []
    for g in range(g0, g1):
        for b in range(2):
            L.append(lambda g=g, b=b: vm.issue("buffer_load_dwordx4 %s, v3, s[8:11], s%d offen offset:%d sc1" % (wd_reg(g, b), 42+b, 1024*(g % 4)), ('WD', g)))
        if g % 4 == 3 and g < 27: L.append("s_add_u32 s42, s42, 4096"); L.append("s_add_u32 s43, s43, 4096")
    return L
def wd_base(p):
    p("s_mul_i32 s42, s24, %d\ns_mul_i32 s43, s20, %d\ns_add_u32 s42, s42, s43\ns_add_u32 s42, s42, %d\ns_add_u32 s43, s42, %d" % (2*112*1024, 28*1024, WD_F, 112*1024))

def stats_compute_ops():
    class Rec:
        def __init__(self): self.L = []
        def __call__(self, t): self.L.extend(t.split("\n"))
    r = Rec(); stats_compute(r)
    import re
    out = []
    for t in r.L:
        m = re.match(r"v_pk_add_f32 v\[(\d+):\d+\], v\[(\d+):\d+\], v\[(\d+):\d+\]", t)
        if m:
            d, a, b = map(int, m.groups())
            out += ["v_add_f32 v%d, v%d, v%d" % (d, a, b), "v_add_f32 v%d, v%d, v%d" % (d+1, a+1, b+1)]
        else: out.append(t)
    return out

class Sched:
    def __init__(self, p, carry=8, vgap=2):
        self.p = p; self.pend = []; self.vq = []; self.credit = 0; self.carry = carry; self.vgap = vgap; self.vlast = -99; self.t = 0
    def add(self, ops): self.pend.extend(ops)
    def addv(self, groups): self.vq.extend(groups)
    def step(self, budget, flush=False):
        self.t += 1
        self.credit = min(self.credit, self.carry) + budget
        while self.vq and (flush or self.t - self.vlast >= self.vgap):
            for f in self.vq.pop(0):
                self.credit -= fcost(f); run_fill(self.p, f)
            self.vlast = self.t
        while self.pend and (flush or self.credit >= fcost(self.pend[0]) - 2):
            f = self.pend.pop(0); self.credit -= fcost(f); run_fill(self.p, f)
        if flush:
            while self.vq:
                for f in self.vq.pop(0): run_fill(self.p, f)
        if not self.pend: self.credit = min(self.credit, 0)
def vgroups(ops):
    G = []; cur = []
    for o in ops:
        cur.append(o)
        if callable(o): G.append(cur); cur = []
    if cur: G[-1].extend(cur)
    return G

def b1_main(p):
    vm = VM(p)
    p("s_lshl_b32 s27, s21, 2\ns_add_u32 s27, s27, s20")
    p("s_add_u32 s65, s64, %d" % (F_XB*32768))
    p("v_add_u32 v8, 49152, v3\nv_add_u32 v9, 0x%x, v3\nv_add_u32 v10, 0x%x, v3" % (2*49152, 3*49152))
    p("s_mul_i32 s34, s27, 112\ns_mul_i32 s35, s22, 7\ns_add_u32 s34, s34, s35\ns_lshl_b32 s34, s34, 10\ns_add_u32 s34, s34, %d\ns_add_u32 s34, s34, s7" % HF)
    p("s_add_u32 s35, s34, 4096")
    p("s_lshl_b32 s32, s27, 15\ns_add_u32 s32, s32, %d\ns_add_u32 s32, s32, s7" % XB)
    p("s_waitcnt vmcnt(0)\ns_barrier")
    ACC = 64; WF = 176; NWF = 8; D = 6; CH = 16
    NI1 = OPT.get('NI1', 3)
    units = [(i, g) for g in range(32) for i in range(NI1)] + [(i, g) for i in range(NI1, 7) for g in range(32)]
    n = len(units)
    def rd(u):
        o = SLOTSEQ[(u // CH) % 10]*16384 + (u % CH)*1024
        b = o // 49152
        r = WF + 4*(u % NWF)
        p("ds_read_b128 v[%d:%d], %s offset:%d" % (r, r+3, ['v3', 'v8', 'v9', 'v10'][b], o - b*49152))
    for u in range(D): rd(u)
    spin_wait(p, vm, "v250", "s65")
    stamp(p, 'b1_wait')
    def xload(g):
        vm.issue("buffer_load_dwordx4 a[%d:%d], v3, s[8:11], s32 offen offset:%d sc1" % (4*g, 4*g+3, 1024*(g % 4)), ('X', g))
        if g % 4 == 3 and g < 31: p("s_add_u32 s32, s32, 4096")
    NX0 = OPT.get('B1NX0', 16)
    xload(0); xload(1)
    stats_loads(p, vm, STB)
    for g in range(2, NX0): xload(g)
    TMP = {}
    free = {32: True, 64: False, 80: False}
    def mark(r): free[r] = True
    def epi(i):
        A = ACC+16*i
        T = 16 + 8*(i % 2)
        L = []
        if i in TMP:
            t = TMP[i]
            for j in range(0, 16, 2): L.append("v_pk_add_f32 v[%d:%d], v[%d:%d], v[%d:%d]" % (A+j, A+j+1, A+j, A+j+1, t+j, t+j+1))
            L.append(lambda: mark(t))
        for j in range(8): L.append("v_mul_f32 v%d, v%d, v62" % (T+j, A+j))
        for j in range(8): L.append("v_exp_f32 v%d, v%d" % (T+j, T+j))
        for j in range(8): L.append("v_fma_f32 v%d, v%d, v61, v61" % (T+j, T+j))
        for j in range(8): L.append("v_rcp_f32 v%d, v%d" % (T+j, T+j))
        for j in range(8): L.append("v_mul_f32 v%d, v%d, v%d" % (T+j, T+j, A+8+j))
        for j in range(4): L.append("v_cvt_pk_bf16_f32 v%d, v%d, v%d" % (A+j, T+2*j, T+2*j+1))
        sreg, off = ('s34', 1024*i) if i < 4 else ('s35', 1024*(i-4))
        L.append(lambda: vm.issue("buffer_store_dwordx4 v[%d:%d], v3, s[8:11], %s offen offset:%d sc1" % (A, A+3, sreg, off), 'st'))
        if i < 2: L.append(lambda: mark(A))
        return L
    sched = {}; schedv = {}
    def at(s, ops): sched.setdefault(s, []).extend(ops)
    def atv(s, groups): schedv.setdefault(s, []).extend(groups)
    AUGS = OPT.get('B1AUG', 20)
    at(1, [lambda: vm.wait(['stats'])] + stats_compute_ops() + ["v_mul_f32 v62, 0x%x, v60" % fbits(-LOG2E)])
    atv(0, [[lambda g=g: xload(g)] for g in range(NX0, 32)])
    P1 = 32*NI1
    wst = OPT.get('B1W', [66, 100, 116, 132])
    sc = Sched(p, vgap=OPT.get('VGAP', 2))
    def epi_v(i):
        L = epi(i); st = [f for f in L if callable(f) and 'issue' in f.__code__.co_names][0]
        k = L.index(st)
        L[k] = lambda st=st: sc.addv([[st]])
        L[k].__code__
        return L
    wd = vgroups(wd_ops(vm, 8, 21))
    for q in range(10, 14): atv(wst[q-10], vgroups(b1_chunk_ops(vm, q)))
    atv(76, wd[:8])
    atv(108, wd[8:12]); atv(124, wd[12:16]); atv(140, wd[16:])
    for i in range(NI1): at(P1 + 2, epi_v(i))
    for i in range(NI1, 6): at(P1 + 32*(i - NI1 + 1) + 2, epi_v(i))
    stamp(p, 'b1_go')
    xw = set(); started = set()
    for s in range(n):
        new = sched.get(s, [])
        sc.add(new); sc.addv(schedv.get(s, []))
        a, g = units[s]
        if g not in xw:
            vm.wait([('X', g)]); xw.add(g)
        ov = 13
        if s % 2 == 0:
            nout = min(s + D, n) - s
            p("s_waitcnt lgkmcnt(%d)" % max(nout - 2, 0)); ov += 4
        r = WF + 4*(s % NWF); A = ACC + 16*a
        key = a
        if a in TMP and g % 2 == 1:
            A = TMP[a]; key = ('t', a)
            if key not in started:
                assert free[A], ("temp acc busy", a, s); free[A] = False
        c = "v[%d:%d]" % (A, A+15) if key in started else "0"
        started.add(key)
        p("v_mfma_f32_32x32x16_bf16 v[%d:%d], v[%d:%d], a[%d:%d], %s" % (A, A+15, r, r+3, 4*g, 4*g+3, c))
        nxt = s + D
        if nxt < n:
            if nxt % CH == 0 and nxt // CH >= 10:
                vm.wait([('W', nxt // CH)]); p("s_barrier"); ov += 8
            rd(nxt)
        if s == AUGS:
            assert not any(isinstance(f, str) and 'v5' in f for f in sc.pend), "stats not finished"
            for i in range(7):
                A = ACC + 16*i
                c = "v[%d:%d]" % (A, A+15) if i in started else "0"
                started.add(i)
                p("v_mfma_f32_32x32x16_bf16 v[%d:%d], v[%d:%d], v[56:59], %s" % (A, A+15, AUGB+4*i, AUGB+3+4*i, c))
                sc.step(24)
        if s == P1: stamp(p, 'b1_p1')
        if s == 64: p("s_barrier"); ov += 4
        sc.step(32 - ov - OPT.get('B1SL', 0), flush=(s == n-1))
    assert not sc.pend and not sc.vq
    stamp(p, 'b1_mm')
    for f in epi(6): run_fill(p, f)
    p("s_add_u32 s65, s64, %d" % (F_H*32768))
    publish(p, vm, "s65")
    stamp(p, 'b1_pub')
```

```python
from asmgen import *
from mlayout import *
import struct
def fbits(x): return struct.unpack('<I', struct.pack('<f', x))[0]
LOG2E = 1.4426950408889634
OPT = dict(INSTR=False, SPIN=20000, STOP=None)

class VM:
    def __init__(self, p):
        self.p = p; self.q = []; self.done = 0
    def issue(self, text, tag):
        self.p(text); self.q.append(tag)
    def wait(self, tags):
        tags = set(tags)
        last = -1
        for i, t in enumerate(self.q):
            if t in tags: last = i
        if last < 0 and not getattr(self, 'lenient', False): raise Exception("wait on never-issued tag %s" % (tags,))
        if last < self.done: return
        n = len(self.q) - 1 - last
        if n > 63:
            raise Exception("vmcnt overflow %d" % n)
        self.p("s_waitcnt vmcnt(%d)" % n)
        self.done = last + 1
    def wait_all(self):
        self.p("s_waitcnt vmcnt(0)"); self.done = len(self.q)
    def outstanding(self): return len(self.q) - self.done

_stamp_names = []
def stamp(p, name):
    if not OPT['INSTR']: return
    _stamp_names.append(name)
    p("s_memtime s[98:99]" if OPT.get("CYC") else "s_memrealtime s[98:99]")
    p("s_waitcnt lgkmcnt(0)")
    idx = len(_stamp_names) - 1
    p("s_lshl_b32 s97, s3, 5\ns_add_u32 s97, s97, %d" % idx)
    p("s_mov_b32 s96, m0\ns_mov_b32 m0, s97")
    p("v_writelane_b32 v249, s98, m0")
    p("s_mov_b32 m0, s96")

def spin_wait(p, vm, voff, soff, nreg=1, label=None):
    L = p.newlabel('W'); D = p.newlabel('WD')
    p("s_mov_b32 s62, %d" % OPT['SPIN'])
    p.label(L)
    if nreg == 1:
        p("buffer_load_dword v16, %s, s[8:11], %s offen sc1" % (voff, soff))
        p("s_waitcnt vmcnt(0)")
        p("v_cmp_ne_u32 vcc, s6, v16")
    else:
        p("buffer_load_dwordx4 v[16:19], %s, s[8:11], %s offen sc1" % (voff, soff))
        p("s_waitcnt vmcnt(0)")
        p("v_xor_b32 v16, s6, v16\nv_xor_b32 v17, s6, v17\nv_xor_b32 v18, s6, v18\nv_xor_b32 v19, s6, v19")
        p("v_or3_b32 v16, v16, v17, v18\nv_or_b32 v16, v16, v19")
        p("v_cmp_ne_u32 vcc, 0, v16")
    p("s_cbranch_vccz %s" % D)
    p("s_sub_u32 s62, s62, 1")
    p("s_cmp_lg_u32 s62, 0")
    p("s_cbranch_scc1 %s" % L)
    p.label(D)
    if vm is not None: vm.done = len(vm.q)

def publish(p, vm, fidx_sreg_expr, per_wave=True):
    p("s_waitcnt vmcnt(0)")
    if vm is not None: vm.done = len(vm.q)
    p("s_lshl_b32 s62, s2, 7\ns_lshl_b32 s63, s20, 2\ns_add_u32 s62, s62, s63\ns_add_u32 s62, s62, %s" % fidx_sreg_expr)
    p("v_mov_b32 v16, s6\nv_mov_b32 v17, 0")
    p("s_mov_b64 exec, 1")
    p("buffer_store_dword v16, v17, s[8:11], s62 offen sc1")
    p("s_mov_b64 exec, -1")
    if vm is not None: vm.q.append('flag')

def run_fill(p, f):
    if callable(f): f()
    else: p(f)

def fcost(f):
    if callable(f): return 0 if ('mark' in f.__code__.co_names or 'addv' in f.__code__.co_names) else 6
    op = f.split()[0]
    if op in TRANS: return 8
    if op.startswith('s_'): return 4
    if op.startswith('v_pk_'): return 4
    if op.startswith('ds_') or op.startswith('buffer_'): return 6
    return 4
```
